```python
import torch

def _softmax(x, axis=-1):
    return torch.softmax(x, dim=axis)
def _gelu(x):
    return torch.nn.functional.gelu(x, approximate="tanh")
def _silu(x):
    return torch.nn.functional.silu(x)
def _sigmoid(x):
    return torch.sigmoid(x)
def _layernorm(x, axis=-1, eps=1e-5):
    m = x.mean(dim=axis, keepdim=True)
    v = x.var(dim=axis, keepdim=True, unbiased=False)
    return (x - m) / torch.sqrt(v + eps)
def _scatter_add(tgt, idx, src, axis=0):
    return tgt.clone().index_add_(axis, idx, src)
def _segment_sum(src, seg, n):
    out = torch.zeros((n,) + src.shape[1:], dtype=src.dtype)
    return out.index_add_(0, seg, src)
def _pad(x, pw):
    flat = tuple(v for pair in reversed(pw) for v in pair)
    return torch.nn.functional.pad(x, flat)

kernel_name = 'parallel_sum__linear_attn_block__mixer_s_mlp__prompt'

def setup_inputs():

    _w = (lambda a: (lambda t: t.to(torch.bfloat16) if t.is_floating_point() else t)(torch.as_tensor(a)))
    def _A_setup():
        B, S, D = 1, 2048, 512
        return {
            "x": _w((lambda *s: torch.randn(*s, dtype=torch.bfloat16) * 0.05)(B, S, D)),
            "wqkv": _w((lambda *s: torch.randn(*s, dtype=torch.bfloat16) * 0.4)(D, 3 * D)),
            "wo": _w((lambda *s: torch.randn(*s, dtype=torch.bfloat16) * 0.1)(D, D)),
        }
    _A_in = _A_setup()

    def _B_setup():
        B, S, D, F = 1, 2048, 512, 1792
        return {
            "x":  _w((lambda *s: torch.randn(*s, dtype=torch.bfloat16) * 0.05)(B, S, D)),
            "w1": _w((lambda *s: torch.randn(*s, dtype=torch.bfloat16) * 0.8)(D, D) * (D ** -0.5)),
            "w2": _w((lambda *s: torch.randn(*s, dtype=torch.bfloat16) * 0.8)(D, D) * (D ** -0.5)),
            "w3": _w((lambda *s: torch.randn(*s, dtype=torch.bfloat16) * 0.8)(D, F) * (D ** -0.5)),
            "w4": _w((lambda *s: torch.randn(*s, dtype=torch.bfloat16) * 0.8)(F, D) * (F ** -0.5)),
        }
    _B_in = _B_setup()

    return {
        "A_x": _A_in["x"],
        "A_wqkv": _A_in["wqkv"],
        "A_wo": _A_in["wo"],
        "B_x": _B_in["x"],
        "B_w1": _B_in["w1"],
        "B_w2": _B_in["w2"],
        "B_w3": _B_in["w3"],
        "B_w4": _B_in["w4"],
    }

def reference(A_x, A_wqkv, A_wo, B_x, B_w1, B_w2, B_w3, B_w4):
    def _A_ref(x, wqkv, wo):
        B, S, D = x.shape
        H = 32; Dh = D // H
        qkv = (lambda x, *d: x.permute(*d))((x @ wqkv).reshape(B, S, 3, H, Dh), 2, 0, 3, 1, 4)
        q, k, v = qkv[0], qkv[1], qkv[2]
        phi = lambda t: torch.where(t > 0, t + 1, torch.exp(t)) + 1e-6
        pq, pk = phi(q), phi(k)
        kv = torch.einsum("bhsd,bhse->bhde", pk, v)
        z = torch.einsum("bhsd->bhd", pk)
        num = torch.einsum("bhqd,bhde->bhqe", pq, kv)
        den = torch.einsum("bhqd,bhd->bhq", pq, z)[..., None] + 1e-6
        o = num / den
        return (lambda x, *d: x.permute(*d))(o, 0, 2, 1, 3).reshape(B, S, D) @ wo

    def _B_ref(x, w1, w2, w3, w4):
        B, S, D = x.shape
        h = _gelu(_layernorm(x, axis=-1) @ w1)
        c = D // 4
        g0 = _pad(h[:, :, 0*c:1*c], ((0, 0), (1, 0), (0, 0)))[:, :S, :]
        g1 = _pad(h[:, :, 1*c:2*c], ((0, 0), (0, 1), (0, 0)))[:, 1:, :]
        g2 = _pad(h[:, :, 2*c:3*c], ((0, 0), (2, 0), (0, 0)))[:, :S, :]
        g3 = _pad(h[:, :, 3*c:   ], ((0, 0), (0, 2), (0, 0)))[:, 2:, :]
        hs = torch.concatenate([g0, g1, g2, g3], axis=-1) @ w2
        x1 = x + hs
        h2 = _gelu(_layernorm(x1, axis=-1) @ w3) @ w4
        return x1 + h2

    x = A_x
    xn = _layernorm(x, axis=-1)
    return x + _A_ref(xn, A_wqkv, A_wo) + _B_ref(xn, B_w1, B_w2, B_w3, B_w4)
```

```python
import re

class Stream:
    def __init__(self):
        self.lines = []
        self.vm = []
        self.lg = []
    def __call__(self, s):
        self.lines.append(s)
    def vmem(self, s, tag):
        self.lines.append(s); self.vm.append(tag)
        assert len(self.vm) <= 63, "too many vmem ops in flight: %d" % len(self.vm)
    def lds(self, s, tag):
        self.lines.append(s); self.lg.append(tag)
    @staticmethod
    def _need(q, tags):
        if not isinstance(tags, (list, tuple, set)): tags = [tags]
        last = -1
        for i, t in enumerate(q):
            if t in tags: last = i
        return last
    def wait(self, vm=None, lg=None):
        parts = []
        if vm is not None:
            last = len(self.vm) - 1 if vm == "all" else self._need(self.vm, vm)
            if last >= 0:
                parts.append("vmcnt(%d)" % (len(self.vm) - 1 - last))
                self.vm = self.vm[last + 1:]
        if lg is not None:
            last = len(self.lg) - 1 if lg == "all" else self._need(self.lg, lg)
            if last >= 0:
                n = len(self.lg) - 1 - last
                if n > 15:
                    n = 15
                parts.append("lgkmcnt(%d)" % n)
                self.lg = self.lg[len(self.lg) - n:] if n else []
        if parts:
            self.lines.append("s_waitcnt " + " ".join(parts))

_reg = re.compile(r"^(-|abs\()?([vas])(\d+)\)?$")
_rng = re.compile(r"^(-)?([vas])\[(\d+):(\d+)\]$")
def regs(tok):
    tok = tok.strip()
    m = _reg.match(tok)
    if m: return {(m.group(2), int(m.group(3)))}
    m = _rng.match(tok)
    if m: return {(m.group(2), i) for i in range(int(m.group(3)), int(m.group(4)) + 1)}
    if tok == "vcc": return {("s", "vcc")}
    if tok == "exec": return {("s", "exec")}
    if tok == "m0": return {("s", "m0")}
    return set()

TRANS = ("v_exp_", "v_log_", "v_rcp_", "v_rsq_", "v_sqrt_", "v_sin_", "v_cos_")
def parse(line):
    s = line.split(";")[0].strip()
    if not s or s.endswith(":") or s.startswith("."): return None
    sp = s.split(None, 1)
    op = sp[0]
    rest = sp[1] if len(sp) > 1 else ""
    toks = []
    depth = 0; cur = ""
    for ch in rest:
        if ch == "[": depth += 1
        if ch == "]": depth -= 1
        if ch == "," and depth == 0: toks.append(cur); cur = ""
        else: cur += ch
    if cur.strip(): toks.append(cur)
    ops = [t.strip().split()[0] if t.strip() else "" for t in toks]
    mods = " " + (toks[-1] if toks else "") + " "
    d = dict(op=op, defs=set(), uses=set(), kind="other", passes=0, srcc=set(), srcab=set(), sdata=set(), ws=1)
    R = [regs(o) for o in ops]
    allu = set().union(*R) if R else set()
    if op == "s_nop":
        d["ws"] = int(ops[0], 0) + 1; d["kind"] = "nop"
    elif op.startswith("v_mfma"):
        d["kind"] = "mfma"; d["defs"] = R[0]; d["srcab"] = R[1] | R[2]; d["srcc"] = R[3]; d["uses"] = R[1] | R[2] | R[3]
        d["passes"] = 8 if "32x32x16" in op else 4 if "16x16x32" in op else 2 if "4x4x4" in op else None
        assert d["passes"], op
    elif op.startswith("buffer_") or op.startswith("global_"):
        d["kind"] = "vmem"
        if " lds " in mods:
            d["uses"] = allu | {("s", "m0")}; d["dma"] = True
        elif "load" in op:
            d["defs"] = R[0]; d["uses"] = set().union(*R[1:])
        else:
            d["uses"] = allu
            if "x4" in op or "x3" in op:
                d["sdata"] = R[0] if op.startswith("buffer_") else R[1]
    elif op.startswith("ds_"):
        d["kind"] = "ds"
        if "read" in op or "permute" in op: d["defs"] = R[0]; d["uses"] = set().union(*R[1:])
        else: d["uses"] = allu
    elif op.startswith("v_"):
        d["kind"] = "valu"
        if op.startswith("v_permlane") and "swap" in op:
            d["defs"] = allu; d["uses"] = allu; d["perm"] = True
        elif op.startswith("v_cmp"):
            d["defs"] = R[0]; d["uses"] = set().union(*R[1:])
        elif op.startswith("v_readfirstlane") or op.startswith("v_readlane"):
            d["defs"] = R[0]; d["uses"] = set().union(*R[1:]); d["rdlane"] = True
        else:
            d["defs"] = R[0]; d["uses"] = set().union(*R[1:]) if len(R) > 1 else set()
            if op.startswith("v_fmac") or op.startswith("v_dot2c"): d["uses"] |= R[0]
            if op.startswith("v_cndmask") and len(ops) == 3: d["uses"] |= {("s", "vcc")}
        if "_dpp" in op or "row_" in mods or "quad_perm" in mods: d["dpp"] = True; d["uses"] |= R[0]
        if op.startswith(TRANS): d["trans"] = True
    elif op.startswith("s_"):
        d["kind"] = "salu"
        if op.startswith(("s_cmp", "s_cbranch", "s_branch", "s_waitcnt", "s_barrier", "s_endpgm", "s_sleep", "s_setprio", "s_bitcmp")):
            d["uses"] = allu
        else:
            d["defs"] = R[0] if R else set(); d["uses"] = set().union(*R[1:]) if len(R) > 1 else set()
    return d

def isv(r): return r[0] in "va"
def need_ws(p, c):
    n = 0
    pv = {r for r in p["defs"] if isv(r)}
    ps = {r for r in p["defs"] if not isv(r)}
    if p["kind"] == "valu":
        if c["kind"] == "mfma" and pv & c["uses"]: n = max(n, 2)
        if c.get("perm") and pv & c["uses"]: n = max(n, 2)
        if c.get("dpp") and pv & c["uses"]: n = max(n, 2)
        if c.get("rdlane") and pv & c["uses"]: n = max(n, 1)
        if p.get("trans") and c["kind"] == "valu" and not c.get("trans") and pv & c["uses"]: n = max(n, 1)
        if ps & c["uses"]:
            if c["kind"] == "valu": n = max(n, 4 if c.get("rdlane") else 2)
            if c["kind"] == "vmem": n = max(n, 5)
            if c["kind"] == "salu": n = max(n, 2)
    if p["kind"] == "mfma":
        t = {2: 5, 4: 8, 8: 12}[p["passes"]]
        if c["kind"] == "mfma":
            if pv & c["srcab"]: n = max(n, t)
            if pv & c["srcc"]:
                if c["srcc"] == pv and c["passes"] == p["passes"]: n = max(n, 2 if p["passes"] == 2 else 0)
                else: n = max(n, {2: 4, 4: 6, 8: 10}[p["passes"]])
            elif pv & c["defs"]: n = max(n, t)
        elif c["kind"] in ("valu", "vmem", "ds"):
            if pv & (c["uses"] | c["defs"]): n = max(n, t)
        if c["kind"] == "valu" and p["srcc"] & c["defs"]: n = max(n, {2: 1, 4: 3, 8: 7}[p["passes"]])
    if p["kind"] == "salu" and ("s", "m0") in ps and c.get("dma"): n = max(n, 1)
    if p["kind"] == "vmem" and p["sdata"] & c["defs"]: n = max(n, 2)
    return n

def fix_hazards(lines):
    out = []; hist = []
    pos = 0; added = 0
    for ln in lines:
        c = parse(ln)
        if c is None:
            out.append(ln); continue
        req = 0
        for (pp, p) in hist:
            dist = pos - pp - 1
            k = need_ws(p, c) - dist
            if k > req: req = k
        if req > 0:
            out.append("s_nop %d" % (req - 1)); pos += req; added += req
        out.append(ln)
        pos += c["ws"]
        hist.append((pos - 1, c))
        hist = [(pp, p) for (pp, p) in hist if pos - pp <= 21]
    return out, added
```

```python
import sys
from asmlib import Stream, fix_hazards

KNAME = "parallel_sum__linear_attn_block__mixer_s_mlp__prompt_kernel"
OOB = 0x80000000
HF, X1F, GO, KVP, KVF, ST, PST, FL, FG, STAMPS = 0x0, 0x200000, 0x400000, 0xD00000, 0xF00000, 0xF10000, 0xF20000, 0xF40000, 0xF41000, 0x1000000
WS_BYTES = 0x1100000
SX, SWF, SW2, SW3, SW4, SWO, SOUT, SDBG, SWS = 4, 8, 12, 16, 20, 24, 28, 32, 36
sW, sG, sC, sR0, sN8, sT0, sT1, sT2, sOA, sOB, sM0, sM1 = 62, 63, 64, 65, 66, 67, 68, 69, 70, 71, 72, 73
sONE, sL2E, sTO, sSPL = 74, 76, 78, 79
sMK = 80
sRB, sCQ, sROW0, sA = 88, 89, 90, 91
sRH4, sCT = 92, 93
STAMP_REGS = [40, 42, 44, 46, 48, 50, 52, 54, 56, 58, 60, 94, 96, 98, 100]
C0 = -2.0 * 0.7978845608028654 * 1.4426950408889634
C1 = C0 * 0.044715

import struct
def fbits(x): return "0x%08x" % struct.unpack("<I", struct.pack("<f", x))[0]
def srd(b): return f"s[{b}:{b+3}]"
def v(b, n=1): return f"v{b}" if n == 1 else f"v[{b}:{b+n-1}]"
def a(b, n=1): return f"a{b}" if n == 1 else f"a[{b}:{b+n-1}]"

class Regs:
    def __init__(self, lo, hi):
        self.free = [True] * hi
        for i in range(lo): self.free[i] = False
        self.sz = {}; self.hw = lo
    def get(self, n=1, al=None):
        al = al or (1 if n == 1 else 2 if n == 2 else 4)
        i = 0
        while i + n <= len(self.free):
            if all(self.free[i:i + n]):
                for k in range(i, i + n): self.free[k] = False
                self.sz[i] = n; self.hw = max(self.hw, i + n); return i
            i += al
        raise RuntimeError("out of registers")
    def put(self, *bs):
        for b in bs:
            for k in range(b, b + self.sz.pop(b)): self.free[k] = True

class Gen:
    def __init__(self, opt):
        self.o = opt
        self.tail = []
        self.nlab = 0
    def label(self, p):
        self.nlab += 1; return f"L_{p}_{self.nlab}"

    def stamp(self, S, i):
        if self.o.get("stamps"):
            r = STAMP_REGS[i]; S(f"s_memrealtime s[{r}:{r+1}]")
    def dma(self, S, m0s, m0c, soff, rs, voffs, tag, aux="", sreg=sOA, width="dwordx4"):
        def first(S=S):
            S(f"s_add_u32 m0, s{m0s}, {m0c}")
            if isinstance(soff, tuple): S(f"s_add_u32 s{sreg}, s{soff[0]}, {soff[1]}")
            else: S(f"s_mov_b32 s{sreg}, {soff}")
        out = []
        for j, vo in enumerate(voffs):
            def f(j=j, vo=vo):
                if j == 0: first()
                off = f" offset:{1024*j}" if j else ""
                S.vmem(f"buffer_load_{width} v{vo}, {srd(rs)}, s{sreg} offen{off} {aux} lds".replace("  ", " "), tag)
            f.tag = tag
            out.append(f)
        return out
    def gload(self, S, dst, vo, rs, soff, imm, tag, aux="", width="dwordx4"):
        off = f" offset:{imm}" if imm else ""
        S.vmem(f"buffer_load_{width} {dst}, v{vo}, {srd(rs)}, {soff} offen{off} {aux}".rstrip(), tag)
    def gstore(self, S, src, vo, rs, soff, imm, tag, aux="", width="dwordx4"):
        off = f" offset:{imm}" if imm else ""
        S.vmem(f"buffer_store_{width} {src}, v{vo}, {srd(rs)}, {soff} offen{off} {aux}".rstrip(), tag)
    def interleave(self, S, mf, urgent, lazy, per=3):
        urgent = list(urgent); n = len(mf)
        big = [i for i, m in enumerate(mf) if "32x32x16" in m[0]]
        for i, (txt, lg, vm) in enumerate(mf):
            lazy.ensure(vm)
            S.wait(vm=vm, lg=lg)
            S(txt)
            if i in big:
                k = 0
                while urgent and k < per: urgent.pop(0)(); k += 1
                left = len([x for x in big if x >= i])
                q = -(-lazy.quota // left) if lazy.quota > 0 else 0
                for _ in range(q):
                    if lazy.items and k < per + 2: lazy.items.pop(0)(); lazy.quota -= 1; k += 1
        for f in urgent: f()
    class Lazy:
        def __init__(self): self.items = []; self.quota = 0
        def add(self, fs): self.items += list(fs)
        def plan(self, steps_left): self.quota = -(-len(self.items) // max(steps_left, 1))
        def ensure(self, tags):
            while tags and any(getattr(f, "tag", None) in tags for f in self.items): self.items.pop(0)()
        def flush(self):
            while self.items: self.items.pop(0)()
    def rebias(self, S, regs_, state, want):
        d = want - state[0]
        if d:
            for r in regs_: S(f"v_add_u32 v{r}, {d & 0xffffffff:#x}, v{r}")
            state[0] = want
    def poll_issue(self, S, vP, vOff, tag):
        self.gload(S, v(vP), vOff, SWS, 0, 0, tag, "sc1", "dword")
    def poll_eval(self, S, vP, vReq):
        S(f"v_subrev_u32 v{vP}, s{sN8}, v{vP}")
        S(f"v_cmp_gt_u32 vcc, 8, v{vP}")
        S(f"v_cndmask_b32 v{vP}, 0, v{vP}, vcc")
        S(f"v_cmp_lt_u32 vcc, v{vP}, v{vReq}")
        S("s_nop 1")
    def poll_check(self, S, vP, vOff, vReq, tag):
        S.wait(vm=tag)
        self.poll_eval(S, vP, vReq)
        slow, back = self.label("slow"), self.label("back")
        S(f"s_cbranch_vccnz {slow}"); S(f"{back}:")
        T = Stream()
        T(f"{slow}:"); T(f"s_mov_b32 s{sTO}, {self.o.get('timeout', 1 << 18)}")
        T(f"{slow}_l:")
        T(f"buffer_load_dword v{vP}, v{vOff}, {srd(SWS)}, 0 offen sc1"); T("s_waitcnt vmcnt(0)")
        self.poll_eval(T, vP, vReq)
        T(f"s_cbranch_vccz {back}")
        T(f"s_sub_u32 s{sTO}, s{sTO}, 1"); T(f"s_cmp_lg_u32 s{sTO}, 0"); T(f"s_cbranch_scc1 {slow}_l")
        T(f"s_branch {back}")
        self.tail += T.lines
    def publish(self, S, vT, vOff, ev, tags):
        S.wait(vm=tags)
        S(f"s_add_u32 s{sT0}, s{sN8}, {ev}"); S(f"v_mov_b32 v{vT}, s{sT0}")
        self.gstore(S, v(vT), vOff, SWS, 0, 0, "flag", "sc1", "dword")
    def nonce_issue(self, S, vN, vZ):
        self.gload(S, v(vN), vZ, SDBG, 0, 0, "nonce", "sc1", "dword")
    def nonce_check(self, S, vN, vZ):
        S.wait(vm="nonce")
        S(f"v_readfirstlane_b32 s{sN8}, v{vN}")
        slow, back = self.label("nslow"), self.label("nback")
        S(f"s_cmp_eq_u32 s{sN8}, 0"); S(f"s_cbranch_scc1 {slow}"); S(f"{back}:")
        T = Stream()
        T(f"{slow}:"); T(f"s_mov_b32 s{sTO}, {self.o.get('timeout', 1 << 18)}")
        T(f"{slow}_l:")
        T(f"buffer_load_dword v{vN}, v{vZ}, {srd(SDBG)}, 0 offen sc1"); T("s_waitcnt vmcnt(0)")
        T(f"v_readfirstlane_b32 s{sN8}, v{vN}"); T("s_nop 1")
        T(f"s_cmp_lg_u32 s{sN8}, 0"); T(f"s_cbranch_scc1 {back}")
        T(f"s_sub_u32 s{sTO}, s{sTO}, 1"); T(f"s_cmp_lg_u32 s{sTO}, 0"); T(f"s_cbranch_scc1 {slow}_l")
        T(f"s_branch {back}")
        self.tail += T.lines
    def mk_srd(self, S, d, p, nbytes):
        S(f"s_mov_b32 s{d}, s{p}"); S(f"s_and_b32 s{d+1}, s{p+1}, 0xffff"); S(f"s_mov_b32 s{d+2}, {nbytes:#x}"); S(f"s_mov_b32 s{d+3}, 0x20000")
    def w256_voffs(self, S, R, stride, scol, t0, t1):
        vo = [R.get() for _ in range(4)]
        S(f"v_lshrrev_b32 v{t0}, 4, v{self.vL}")
        S(f"v_lshlrev_b32 v{t1}, 2, v{t0}")
        S(f"v_xor_b32 v{t1}, v{t1}, v{self.vL}"); S(f"v_and_b32 v{t1}, 15, v{t1}"); S(f"v_lshlrev_b32 v{t1}, 4, v{t1}")
        S(f"s_lshl_b32 s{sT0}, s{sW}, 4"); S(f"v_add_u32 v{t0}, s{sT0}, v{t0}")
        S(f"v_mul_u32_u24 v{t0}, {stride}, v{t0}")
        S(f"v_add3_u32 v{vo[0]}, v{t0}, v{t1}, s{scol}")
        for j in range(1, 4): S(f"v_add_u32 v{vo[j]}, {j*(4*stride-1024)}, v{vo[0]}")
        return vo
    def xrow_voffs(self, S, R, n, srow, t0, t1, t2, check):
        vo = [R.get() for _ in range(n)]
        S(f"v_lshrrev_b32 v{t0}, 3, v{self.vL}"); S(f"v_add_u32 v{t0}, s{srow}, v{t0}")
        S(f"v_lshrrev_b32 v{t1}, 4, v{self.vL}"); S(f"v_xor_b32 v{t1}, v{t1}, v{self.vL}"); S(f"v_and_b32 v{t1}, 7, v{t1}"); S(f"v_lshlrev_b32 v{t1}, 4, v{t1}")
        for j in range(n):
            S(f"v_add_u32 v{t2}, {8*j}, v{t0}")
            S(f"v_lshl_add_u32 v{vo[j]}, v{t2}, 10, v{t1}")
            if j & 1: S(f"v_xor_b32 v{vo[j]}, 64, v{vo[j]}")
            if j: S(f"v_subrev_u32 v{vo[j]}, {1024*j}, v{vo[j]}")
            if check:
                S(f"v_cmp_gt_u32 vcc, 0x800, v{t2}"); S(f"v_mov_b32 v{t2}, {OOB:#x}")
                S(f"v_cndmask_b32 v{vo[j]}, v{t2}, v{vo[j]}, vcc")
        return vo
    def trbase(self, S, dst, t0, rowbytes, hrows):
        S(f"v_bfe_u32 v{dst}, v{self.vL}, 2, 2"); S(f"v_lshrrev_b32 v{t0}, 5, v{self.vL}")
        S(f"v_mul_u32_u24 v{t0}, {hrows}, v{t0}"); S(f"v_add_u32 v{dst}, v{dst}, v{t0}"); S(f"v_mul_u32_u24 v{dst}, {rowbytes}, v{dst}")
        S(f"v_bfe_u32 v{t0}, v{self.vL}, 4, 1"); S(f"v_lshl_add_u32 v{dst}, v{t0}, 5, v{dst}")
        S(f"v_and_b32 v{t0}, 3, v{self.vL}"); S(f"v_lshl_add_u32 v{dst}, v{t0}, 3, v{dst}")
    def mk_sel(self, S, R, t0, t1):
        sel = R.get(4)
        S(f"v_lshrrev_b32 v{t0}, 2, v{self.vL}"); S(f"v_lshrrev_b32 v{t1}, 4, v{self.vL}"); S(f"v_xor_b32 v{t0}, v{t0}, v{t1}"); S(f"v_and_b32 v{t0}, 1, v{t0}")
        S(f"v_cmp_eq_u32 vcc, 0, v{t0}"); S(f"v_mov_b32 v{t1}, 0x3f803f80"); S(f"v_cndmask_b32 v{sel}, 0, v{t1}, vcc")
        for i in range(1, 4): S(f"v_mov_b32 v{sel+i}, v{sel}")
        return sel
    def gelu_unit(self, S, A, C, K, U, P):
        pr = lambda b, i: v(b + 2 * i, 2)
        for i in range(4): S(f"v_pk_fma_f32 {pr(A,i)}, {pr(C,i)}, {v(K+2,2)}, {pr(A,i)} op_sel_hi:[1,0,1]")
        for i in range(4): S(f"v_pk_mul_f32 {pr(U,i)}, {pr(A,i)}, {pr(A,i)}")
        for i in range(4): S(f"v_pk_fma_f32 {pr(U,i)}, {pr(U,i)}, {v(K,2)}, {v(K,2)} op_sel:[0,1,0] op_sel_hi:[1,1,0]")
        for i in range(4): S(f"v_pk_mul_f32 {pr(U,i)}, {pr(U,i)}, {pr(A,i)}")
        for i in range(8): S(f"v_exp_f32 v{U+i}, v{U+i}")
        for i in range(4): S(f"v_pk_fma_f32 {pr(U,i)}, {pr(U,i)}, {v(K+2,2)}, {v(K+2,2)} op_sel:[0,1,1] op_sel_hi:[1,1,1]")
        for i in range(8): S(f"v_rcp_f32 v{U+i}, v{U+i}")
        for i in range(4): S(f"v_pk_mul_f32 {pr(U,i)}, {pr(U,i)}, {pr(A,i)}")
        for i in range(4): S(f"v_cvt_pk_bf16_f32 v{P+i}, v{U+2*i}, v{U+2*i+1}")
    def gelu_consts(self, S, K, s, mean, t):
        S(f"v_mul_f32 v{K}, {fbits(C0)}, v{s}")
        S(f"v_mul_f32 v{t}, v{s}, v{s}"); S(f"v_mul_f32 v{t}, v{t}, v{s}"); S(f"v_mul_f32 v{K+1}, {fbits(C1)}, v{t}")
        S(f"v_sub_f32 v{K+2}, 0, v{mean}"); S(f"v_rcp_f32 v{K+3}, v{s}")
    def ln_stats(self, S, sm, sq, mean, var, rstd):
        S(f"v_mul_f32 v{mean}, {fbits(1/512)}, v{sm}"); S(f"v_mul_f32 v{var}, {fbits(1/512)}, v{sq}")
        S(f"v_fma_f32 v{var}, -v{mean}, v{mean}, v{var}"); S(f"v_max_f32 v{var}, 0, v{var}")
        S(f"v_add_f32 v{rstd}, {fbits(1e-5)}, v{var}"); S(f"v_rsq_f32 v{rstd}, v{rstd}")

    def prologue(self, S):
        S("s_cmp_ge_u32 s2, 0x100"); S("s_cbranch_scc1 L_exit")
        S("s_load_dwordx16 s[40:55], s[0:1], 0"); S("s_load_dwordx4 s[56:59], s[0:1], 64"); S("s_load_dwordx2 s[60:61], s[0:1], 80")
        if self.o.get("stamps"): S(f"s_memrealtime s[{STAMP_REGS[11]}:{STAMP_REGS[11]+1}]")
        S("v_lshrrev_b32 v2, 6, v0"); S("v_and_b32 v1, 63, v0"); S(f"v_readfirstlane_b32 s{sW}, v2"); S("v_lshlrev_b32 v2, 4, v1")
        self.vL, self.vL16 = 1, 2
        S(f"s_and_b32 s{sT0}, s2, 7"); S(f"s_lshr_b32 s{sT1}, s2, 3"); S(f"s_and_b32 s{sC}, s{sT1}, 15"); S(f"s_lshr_b32 s{sT1}, s{sT1}, 4")
        S(f"s_lshl_b32 s{sG}, s{sT0}, 1"); S(f"s_add_u32 s{sG}, s{sG}, s{sT1}"); S(f"s_lshl_b32 s{sR0}, s{sG}, 7")
        S(f"s_cmp_ge_u32 s{sC}, 8"); S("s_cbranch_scc1 L_roleA")
    def rest_srds(self, S):
        self.mk_srd(S, SWS, 60, WS_BYTES); self.mk_srd(S, SDBG, 58, 256); self.mk_srd(S, SW2, 50, 512 * 1024); self.mk_srd(S, SW3, 52, 512 * 3584)
        self.mk_srd(S, SW4, 54, 1792 * 1024); self.mk_srd(S, SWO, 44, 512 * 1024); self.mk_srd(S, SOUT, 56, 2048 * 1024)
    def common_regs(self, S, R):
        self.vFme, self.vFgrp, self.vP, self.vReq, self.vT, self.vZ = [R.get() for _ in range(6)]
        S(f"s_lshl_b32 s{sT0}, s{sG}, 8"); S(f"s_add_u32 s{sT0}, s{sT0}, {FL:#x}")
        S(f"v_lshl_add_u32 v{self.vFgrp}, v{self.vL}, 2, s{sT0}")
        S(f"s_lshl_b32 s{sT1}, s{sC}, 2"); S(f"s_add_u32 s{sT1}, s{sT1}, s{sW}"); S(f"s_lshl_b32 s{sT1}, s{sT1}, 2"); S(f"s_add_u32 s{sT0}, s{sT0}, s{sT1}")
        S(f"v_mov_b32 v{self.vT}, {OOB:#x}"); S(f"v_mov_b32 v{self.vFme}, s{sT0}"); S(f"v_cmp_eq_u32 vcc, 0, v{self.vL}")
        S(f"v_mov_b32 v{self.vZ}, 0")
        S(f"v_cndmask_b32 v{self.vFme}, v{self.vT}, v{self.vFme}, vcc")
        S(f"s_mov_b32 s{sONE}, {fbits(1.000001)}"); S(f"s_mov_b32 s{sONE+1}, {fbits(1e-6)}"); S(f"s_mov_b32 s{sL2E}, {fbits(1.4426950408889634)}"); S(f"s_mov_b32 s{sL2E+1}, 0")
        for i, m in enumerate((0x22222222, 0x44444444, 0x88888888)):
            S(f"s_mov_b32 s{sMK+2*i}, {m:#x}"); S(f"s_mov_b32 s{sMK+2*i+1}, {m:#x}")
        S(f"s_mov_b32 s{sMK+6}, 0"); S(f"s_mov_b32 s{sMK+7}, -1")
        S(f"s_lshr_b32 s{sRH4}, s{sC}, 3"); S(f"s_and_b32 s{sCT}, s{sC}, 7")
    def code_prefetch(self, S, R):
        if not self.o.get("codepf", True): return
        t = R.get(4)
        S(f"s_getpc_b64 s[{sT0+1}:{sT0+2}]")
        lab = self.label("pc"); S(f"{lab}:")
        S(f"s_sub_u32 s{sT0+1}, s{sT0+1}, {lab}-{KNAME}"); S(f"s_subb_u32 s{sT0+2}, s{sT0+2}, 0")
        S(f"s_lshr_b32 s{sT0}, s2, 3"); S(f"s_lshl_b32 s{sT0}, s{sT0}, 2"); S(f"s_add_u32 s{sT0}, s{sT0}, s{sW}"); S(f"s_lshl_b32 s{sT0}, s{sT0}, 9")
        S(f"s_min_u32 s{sT0}, s{sT0}, L_code_end-{KNAME}-512")
        S(f"v_lshl_add_u32 v{t}, v{self.vL}, 3, s{sT0}")
        S.vmem(f"global_load_dwordx2 {v(t+2,2)}, v{t}, s[{sT0+1}:{sT0+2}]", "codepf")
        self.pf_regs = t
    def req(self, S, cond_lines, ev):
        for l in cond_lines: S(l)
        S(f"v_cndmask_b32_e64 v{self.vReq}, 0, {ev}, vcc")

    def gemm_loop(self, S, nst, nu, reads, mfmas, arrive, window, aregs, bias, on_free, extra, per=3):
        lazy = self.Lazy()
        self.rebias(S, aregs, bias, window(0))
        S.wait(vm=arrive(0), lg="all"); S("s_barrier")
        for f in reads(0, 0, 0): f()
        n = 0
        for s in range(nst):
            for u in range(nu):
                cur = n & 1; nxt = cur ^ 1; urgent = []
                if u == nu - 1:
                    if s + 1 < nst:
                        lazy.ensure(arrive(s + 1))
                        S.wait(vm=arrive(s + 1), lg="all"); S("s_barrier")
                        lazy.add(on_free(s)); urgent = reads(s + 1, 0, nxt)
                else:
                    urgent = reads(s, u + 1, nxt)
                    if u == nu - 2 and s + 1 < nst:
                        urgent = urgent + [lambda s=s: self.rebias(S, aregs, bias, window(s + 1))]
                lazy.add(extra(s, u))
                last = s == nst - 1
                lazy.plan((nu - u) if last else (nu if u == nu - 1 else nu - 1 - u))
                self.interleave(S, mfmas(s, u, cur), urgent, lazy, per)
                n += 1
        lazy.flush()
    def rd(self, S, op, dst, addr, off, bias, tag):
        def f():
            o = off - bias[0]; assert 0 <= o < 65536, (off, bias)
            S.lds(f"{op} {dst}, v{addr}" + (f" offset:{o}" if o else ""), tag)
        return f

    def roleB(self):
        o = self.o
        S = Stream(); R = Regs(3, 256); vL = self.vL
        t0, t1, t2 = R.get(), R.get(), R.get()
        S(f"s_and_b32 s{sCQ}, s{sC}, 3"); S(f"s_lshr_b32 s{sT0}, s{sC}, 2"); S(f"s_lshl_b32 s{sT0}, s{sT0}, 6"); S(f"s_add_u32 s{sRB}, s{sR0}, s{sT0}")
        S(f"s_lshr_b32 s{sT0}, s{sCQ}, 1"); S(f"s_add_u32 s{sT0}, s{sT0}, 1"); S(f"s_add_u32 s{sT1}, s{sRB}, s{sT0}"); S(f"s_sub_u32 s{sT2}, s{sRB}, s{sT0}")
        S(f"s_bitcmp1_b32 s{sCQ}, 0"); S(f"s_cselect_b32 s{sROW0}, s{sT1}, s{sT2}")
        S(f"s_lshl_b32 s{sT0}, s{sW}, 4"); S(f"s_add_u32 s{sT1}, s{sROW0}, s{sT0}")
        vX = self.xrow_voffs(S, R, 2, sT1, t0, t1, t2, True)
        S(f"s_lshl_b32 s{sT2}, s{sCQ}, 8")
        vW = self.w256_voffs(S, R, 1024, sT2, t0, t1)
        S(f"s_lshl_b32 s{sM0}, s{sW}, 11"); S(f"s_lshl_b32 s{sM1}, s{sW}, 12"); S(f"s_add_u32 s{sM1}, s{sM1}, 8192")
        S("s_waitcnt lgkmcnt(0)")
        self.mk_srd(S, SX, 40, 2048 * 1024); self.mk_srd(S, SWF, 48, 512 * 1024)
        SL = 24576; XT = 6 * SL
        g1 = lambda st: self.dma(S, sM0, (st % 6) * SL, 128 * st, SX, vX, ("g1", st)) + self.dma(S, sM1, (st % 6) * SL, 65536 * st, SWF, vW, ("g1", st), sreg=sOB)
        for st in range(6):
            for f in g1(st): f()
            if st == 0: self.rest_srds(S)
        self.code_prefetch(S, R)
        self.common_regs(S, R)
        self.stamp(S, 0)
        aA = [R.get() for _ in range(4)]; aW = [[R.get() for _ in range(2)] for _ in range(4)]
        S(f"s_lshr_b32 s{sT0}, s{sW}, 1"); S(f"s_lshl_b32 s{sT0}, s{sT0}, 12")
        S(f"v_and_b32 v{t0}, 31, v{vL}"); S(f"v_lshl_add_u32 v{t0}, v{t0}, 7, s{sT0}")
        S(f"v_bfe_u32 v{t1}, v{vL}, 1, 3"); S(f"v_lshrrev_b32 v{t2}, 5, v{vL}"); S(f"v_xor_b32 v{t1}, v{t1}, v{t2}")
        for k in range(4):
            S(f"s_xor_b32 s{sT0}, s{sW}, {k}"); S(f"s_lshl_b32 s{sT0}, s{sT0}, 1")
            S(f"v_xor_b32 v{t2}, s{sT0}, v{t1}"); S(f"v_lshl_add_u32 v{aA[k]}, v{t2}, 4, v{t0}")
        self.trbase(S, t0, t1, 256, 8)
        S(f"v_bfe_u32 v{t1}, v{vL}, 2, 2"); S(f"s_and_b32 s{sT0}, s{sW}, 1"); S(f"s_lshl_b32 s{sT0}, s{sT0}, 1"); S(f"v_xor_b32 v{t1}, s{sT0}, v{t1}")
        vq0, vq1 = R.get(), R.get()
        S(f"v_lshlrev_b32 v{vq0}, 6, v{t1}"); S(f"v_xor_b32 v{vq1}, 64, v{vq0}")
        for k in range(4):
            S(f"s_xor_b32 s{sT0}, s{sW}, {k}"); S(f"s_lshl_b32 s{sT0}, s{sT0}, 12"); S(f"s_add_u32 s{sT0}, s{sT0}, 8192")
            S(f"v_add3_u32 v{aW[k][0]}, v{t0}, v{vq0}, s{sT0}"); S(f"v_add3_u32 v{aW[k][1]}, v{t0}, v{vq1}, s{sT0}")
        sel = self.mk_sel(S, R, t0, t1)
        acc = [R.get(16), R.get(16)]; fr = [R.get(24), R.get(24)]
        rs, sq, cs = R.get(4), R.get(4), [R.get(4), R.get(4)]
        vXT = [R.get() for _ in range(4)]
        S(f"s_lshl_b32 s{sT0}, s{sW}, 4"); S(f"s_add_u32 s{sT0}, s{sT0}, s{sRB}"); S(f"s_lshl_b32 s{sT0}, s{sT0}, 10"); S(f"s_lshl_b32 s{sT1}, s{sCQ}, 8"); S(f"s_add_u32 s{sT0}, s{sT0}, s{sT1}")
        S(f"v_lshrrev_b32 v{t0}, 4, v{vL}"); S(f"v_xor_b32 v{t1}, v{t0}, v{vL}"); S(f"v_and_b32 v{t1}, 15, v{t1}"); S(f"v_lshl_add_u32 v{t0}, v{t0}, 10, s{sT0}")
        for j in range(4):
            S(f"v_xor_b32 v{t2}, {4*j}, v{t1}"); S(f"v_lshl_add_u32 v{vXT[j]}, v{t2}, 4, v{t0}")
            if j: S(f"v_add_u32 v{vXT[j]}, {3072*j}, v{vXT[j]}")
        npre2 = o.get("npre2", 4)
        w2 = lambda st: self.dma(S, sM1, ((st + 2) % 6) * SL, 65536 * st, SW2, vW, ("w2", st), sreg=sOB)
        SCR = 2 * SL
        vN = R.get()
        def zero_scratch(base):
            def f():
                S(f"v_lshlrev_b32 v{t0}, 2, v0"); S(f"v_add_u32 v{t0}, {base}, v{t0}")
                S.lds(f"ds_write_b32 v{t0}, v{self.vZ}", "zero")
            return f
        def on_free(s):
            if s < 2: return g1(s + 6)
            out = []
            if s == 2: out += [zero_scratch(SCR)] + self.dma(S, sM1, XT - 8192, 0, SX, vXT, "xt")
            if s - 2 < npre2: out += w2(s - 2)
            return out
        bias = [0]
        def reads(s, u, st):
            out = []
            for i, k in enumerate((2 * u, 2 * u + 1)):
                b = fr[st] + 12 * i; base = (s % 6) * SL
                out.append(self.rd(S, "ds_read_b128", v(b, 4), aA[k], base, bias, ("A", s, k)))
                for f in range(2):
                    for r in range(2):
                        out.append(self.rd(S, "ds_read_b64_tr_b16", v(b + 4 + 4 * f + 2 * r, 2), aW[k][f], base + 1024 * r, bias, ("W", s, k, f)))
            return out
        def mfmas(s, u, st):
            out = []
            for i, k in enumerate((2 * u, 2 * u + 1)):
                b = fr[st] + 12 * i; A = v(b, 4); W = [v(b + 4, 4), v(b + 8, 4)]
                z = s == 0 and k == 0
                big = lambda f: (f"v_mfma_f32_32x32x16_bf16 {v(acc[f],16)}, {W[f]}, {A}, {0 if z else v(acc[f],16)}", [("A", s, k), ("W", s, k, f)], None)
                sqm = lambda h: (f"v_mfma_f32_4x4x4_16b_bf16 {v(sq,4)}, {v(b+2*h,2)}, {v(b+2*h,2)}, {0 if (z and h == 0) else v(sq,4)}", None, None)
                out.append(big(0))
                if k in (0, 2): out.append(sqm(0))
                if k in (0, 1): out.append((f"v_mfma_f32_16x16x32_bf16 {v(cs[0],4)}, {v(sel,4)}, {W[0]}, {0 if z else v(cs[0],4)}", None, None))
                out.append(big(1))
                if k in (0, 2):
                    out.append((f"v_mfma_f32_16x16x32_bf16 {v(rs,4)}, {v(sel,4)}, {A}, {0 if z else v(rs,4)}", None, None)); out.append(sqm(1))
                if k in (0, 1): out.append((f"v_mfma_f32_16x16x32_bf16 {v(cs[1],4)}, {v(sel,4)}, {W[1]}, {0 if z else v(cs[1],4)}", None, None))
            return out
        extra = lambda s, u: [lambda: self.nonce_issue(S, vN, self.vZ)] if (s, u) == (6, 0) else []
        allA = aA + [x for p in aW for x in p]
        self.gemm_loop(S, 8, 2, reads, mfmas, lambda s: [("g1", s)], lambda s: ((s % 6) // 2) * 2 * SL, allA, bias, on_free, extra)
        self.stamp(S, 1)
        R.put(*allA); R.put(fr[0], fr[1])
        vS1, vS2 = R.get(), R.get()
        S(f"s_lshr_b32 s{sT0}, s{sW}, 1"); S(f"s_lshl_b32 s{sT0}, s{sT0}, 7"); S(f"s_add_u32 s{sT0}, s{sT0}, {SCR}")
        S(f"v_and_b32 v{t0}, 31, v{vL}"); S(f"v_lshl_add_u32 v{vS1}, v{t0}, 2, s{sT0}")
        S(f"v_lshrrev_b32 v{t1}, 5, v{vL}"); S(f"v_lshl_add_u32 v{t2}, v{t1}, 8, v{vS1}")
        S(f"s_and_b32 s{sT0}, s{sW}, 1"); S(f"s_lshl_b32 s{sT0}, s{sT0}, 8"); S(f"s_add_u32 s{sT0}, s{sT0}, {SCR+512}")
        S(f"v_lshl_add_u32 v{vS2}, v{vL}, 2, s{sT0}")
        for i in range(3): S(f"v_cndmask_b32_e64 v{sq}, v{sq}, v{sq+1+i}, s[{sMK+2*i}:{sMK+2*i+1}]")
        S(f"v_mov_b32 v{sq+1}, v{sq}"); S(f"v_cndmask_b32_e64 v{cs[0]}, v{cs[0]}, v{cs[1]}, s[{sMK+6}:{sMK+7}]")
        S.lds(f"ds_add_f32 v{vS2}, v{cs[0]}", "x")
        S(f"v_permlane32_swap_b32 v{sq}, v{sq+1}"); S(f"v_add_f32 v{sq}, v{sq}, v{sq+1}")
        S(f"v_cndmask_b32_e64 v{rs}, v{rs}, v{sq}, s[{sMK+6}:{sMK+7}]")
        S.lds(f"ds_add_f32 v{t2}, v{rs}", "x")
        S(f"v_lshlrev_b32 v{t1}, 4, v{t1}"); S(f"v_add_u32 v{vS2}, s{sT0}, v{t1}")
        S.wait(lg="all"); S("s_barrier")
        C = R.get(32); K = R.get(4); U = R.get(8); P = [R.get(4), R.get(4)]
        S.lds(f"ds_read2_b32 {v(rs,2)}, v{vS1} offset1:64", "st")
        for f in range(2):
            for q in range(4): S.lds(f"ds_read_b128 {v(C+16*f+4*q,4)}, v{vS2} offset:{128*f+32*q}", ("c", f))
        for st in range(5, npre2):
            for f in w2(st): f()
        vHo, vSt = R.get(), R.get()
        S(f"s_lshr_b32 s{sT0}, s{sRB}, 5"); S(f"s_lshr_b32 s{sT1}, s{sW}, 1"); S(f"s_add_u32 s{sT0}, s{sT0}, s{sT1}"); S(f"s_lshl_b32 s{sT0}, s{sT0}, 15")
        S(f"s_lshl_b32 s{sT1}, s{sCQ}, 13"); S(f"s_add_u32 s{sT0}, s{sT0}, s{sT1}"); S(f"s_and_b32 s{sT1}, s{sW}, 1"); S(f"s_lshl_b32 s{sT1}, s{sT1}, 12"); S(f"s_add_u32 s{sT0}, s{sT0}, s{sT1}")
        S(f"v_add_u32 v{vHo}, s{sT0}, v{self.vL16}")
        S(f"s_lshl_b32 s{sT0}, s{sCQ}, 1"); S(f"s_and_b32 s{sT1}, s{sW}, 1"); S(f"s_add_u32 s{sT0}, s{sT0}, s{sT1}")
        S(f"s_cmp_eq_u32 s{sT0}, 0"); S(f"s_cselect_b32 s{sT1}, 63, 0"); S(f"s_cselect_b32 s{sT2}, 1, 62")
        S(f"s_cmp_eq_u32 s{sT0}, 2"); S(f"s_cselect_b32 s{sT1}, 1, s{sT1}")
        S(f"s_lshr_b32 s{sT0}, s{sW}, 1"); S(f"s_lshl_b32 s{sT0}, s{sT0}, 5"); S(f"v_add_u32 v{t0}, s{sT0}, v{t0}")
        S(f"v_subrev_u32 v{t2}, s{sT2}, v{t0}"); S(f"v_cmp_gt_u32 vcc, s{sT1}, v{t2}")
        S(f"v_add_u32 v{t0}, s{sROW0}, v{t0}"); S(f"v_lshlrev_b32 v{t0}, 2, v{t0}"); S(f"v_lshl_add_u32 v{t0}, v{t1}, 9, v{t0}"); S(f"v_add_u32 v{t0}, {ST:#x}, v{t0}")
        S(f"v_mov_b32 v{t2}, {OOB:#x}"); S(f"v_cndmask_b32 v{vSt}, v{t2}, v{t0}, vcc")
        S.wait(lg="st")
        mean, var, rstd = sq, sq + 1, sq + 2
        self.ln_stats(S, rs, rs + 1, mean, var, rstd)
        S(f"v_mul_f32 v{t0}, v{rstd}, v{rstd}"); S(f"v_cndmask_b32_e64 v{t2}, v{mean}, v{rstd}, s[{sMK+6}:{sMK+7}]")
        S(f"v_mov_b32 v{t1}, {fbits(1e-5)}"); S(f"v_fma_f32 v{t0}, v{t0}, v{var}, v{t1}"); S(f"v_rsq_f32 v{t0}, v{t0}")
        self.gstore(S, v(t2), vSt, SWS, 0, 0, "h", "sc1", "dword")
        S(f"v_mul_f32 v{t0}, v{t0}, v{rstd}")
        self.gelu_consts(S, K, t0, mean, t1)
        for f in range(2):
            S.wait(lg=("c", f))
            for b in range(2):
                self.gelu_unit(S, acc[f] + 8 * b, C + 16 * f + 8 * b, K, U, P[b])
                self.gstore(S, v(P[b], 4), vHo, SWS, 0, 1024 * (2 * f + b), "h", "sc1")
        self.nonce_check(S, vN, self.vZ)
        self.stamp(S, 2)
        self.publish(S, self.vT, self.vFme, 1, "h")
        R.put(C, K, sel, rs, sq, cs[0], cs[1], vS1, vS2, vSt, vN, *vX); R.put(*vXT)
        vA2 = R.get(); aA2 = R.get(); aW2 = [R.get(), R.get()]; vSo = R.get()
        S(f"s_lshr_b32 s{sT0}, s{sRB}, 5"); S(f"s_lshr_b32 s{sT1}, s{sW}, 1"); S(f"s_add_u32 s{sT0}, s{sT0}, s{sT1}"); S(f"s_lshl_b32 s{sT0}, s{sT0}, 15")
        S(f"s_and_b32 s{sT2}, s{sW}, 1"); S(f"s_lshl_b32 s{sT2}, s{sT2}, 11"); S(f"s_add_u32 s{sT0}, s{sT0}, s{sT2}"); S(f"v_add_u32 v{vA2}, s{sT0}, v{self.vL16}")
        S(f"s_lshl_b32 s{sT0}, s{sT1}, 12"); S(f"v_add_u32 v{aA2}, s{sT0}, v{self.vL16}")
        self.trbase(S, t0, t1, 256, 4)
        S(f"s_movk_i32 s{sT0}, 0x2000"); S(f"v_add3_u32 v{aW2[0]}, v{t0}, v{vq0}, s{sT0}"); S(f"v_add3_u32 v{aW2[1]}, v{t0}, v{vq1}, s{sT0}")
        S(f"s_lshr_b32 s{sT0}, s{sW}, 1"); S(f"s_lshl_b32 s{sT0}, s{sT0}, 5"); S(f"s_add_u32 s{sT0}, s{sT0}, s{sRB}"); S(f"s_lshl_b32 s{sT0}, s{sT0}, 2")
        S(f"v_and_b32 v{t0}, 31, v{vL}"); S(f"v_lshl_add_u32 v{vSo}, v{t0}, 2, s{sT0}")
        S(f"s_lshr_b32 s{sT0}, s{sC}, 2")
        self.req(S, [f"v_lshrrev_b32 v{t0}, 4, v{vL}", f"v_cmp_eq_u32 vcc, s{sT0}, v{t0}"], 1)
        self.poll_issue(S, self.vP, self.vFgrp, "poll"); self.poll_check(S, self.vP, self.vFgrp, self.vReq, "poll")
        self.stamp(S, 3)
        a2 = lambda st: self.dma(S, sM0, ((st + 2) % 6) * SL, HF + 4096 * st, SWS, [vA2, vA2], ("a2", st), "sc1")
        mr = R.get(2)
        for st in range(6):
            for f in a2(st): f()
            if st == 0:
                S(f"s_mov_b32 s{sT0}, {ST:#x}"); S(f"s_mov_b32 s{sT1}, {ST+8192:#x}")
                self.gload(S, v(mr + 1), vSo, SWS, f"s{sT0}", 0, "st", "sc1", "dword"); self.gload(S, v(mr), vSo, SWS, f"s{sT1}", 0, "st", "sc1", "dword")
            if st >= npre2:
                for f in w2(st): f()
        g3 = G3(self, S, R, False, [96, 112, 128, 0, 16, 32, 48, 64], 144, [80, 96, 112, 128, 0, 16, 32, 48, 64], (t0, t1, t2))
        fr = [R.get(24), R.get(24)]; xn = R.get(32); xp = R.get(16); xa = R.get(2)
        bias = [0]
        def reads(s, u, st):
            out = []
            for i, k in enumerate((2 * u, 2 * u + 1)):
                b = fr[st] + 12 * i; base = ((s + 2) % 6) * SL
                out.append(self.rd(S, "ds_read_b128", v(b, 4), aA2, base + 1024 * k, bias, ("A", s, k)))
                for f in range(2):
                    for r in range(2):
                        out.append(self.rd(S, "ds_read_b64_tr_b16", v(b + 4 + 4 * f + 2 * r, 2), aW2[f], base + 4096 * k + 2048 * r, bias, ("W", s, k, f)))
            return out
        def mfmas(s, u, st):
            out = []
            for i, k in enumerate((2 * u, 2 * u + 1)):
                b = fr[st] + 12 * i
                for f in range(2):
                    out.append((f"v_mfma_f32_32x32x16_bf16 {v(acc[f],16)}, {v(b+4+4*f,4)}, {v(b,4)}, {0 if (s == 0 and k == 0) else v(acc[f],16)}", [("A", s, k), ("W", s, k, f)], None))
            return out
        def xaddr():
            S(f"s_lshr_b32 s{sT0}, s{sW}, 1"); S(f"s_lshl_b32 s{sT0}, s{sT0}, 13"); S(f"s_add_u32 s{sT0}, s{sT0}, {XT}")
            S(f"v_and_b32 v{t0}, 31, v{vL}"); S(f"v_lshl_add_u32 v{xa}, v{t0}, 8, s{sT0}"); S(f"v_lshrrev_b32 v{t1}, 5, v{vL}"); S(f"v_lshl_add_u32 v{xa}, v{t1}, 3, v{xa}")
            S(f"s_and_b32 s{sT0}, s{sW}, 1"); S(f"s_lshl_b32 s{sT0}, s{sT0}, 3"); S(f"v_and_b32 v{t0}, 15, v{vL}"); S(f"v_xor_b32 v{xa+1}, s{sT0}, v{t0}")
        def xread(i):
            def f():
                S(f"v_xor_b32 v{t0}, {i}, v{xa+1}"); S(f"v_lshl_add_u32 v{t0}, v{t0}, 4, v{xa}")
                S.lds(f"ds_read_b64 {v(xp+2*i,2)}, v{t0}", "xp")
            return f
        def xprep():
            S.wait(vm="st"); S(f"v_mul_f32 v{mr+1}, v{mr+1}, v{mr}"); S(f"v_sub_f32 v{mr+1}, 0, v{mr+1}")
        def xcalc(i):
            def f():
                S(f"v_lshlrev_b32 v{xn+2*i}, 16, v{xp+i}"); S(f"v_and_b32 v{xn+2*i+1}, 0xffff0000, v{xp+i}")
                S(f"v_fma_f32 v{xn+2*i}, v{xn+2*i}, v{mr}, v{mr+1}"); S(f"v_fma_f32 v{xn+2*i+1}, v{xn+2*i+1}, v{mr}, v{mr+1}")
            return f
        def extra(s, u):
            if (s, u) == (0, 0): return [xaddr]
            if s == 1: return [xread(4 * u + i) for i in range(4)]
            if (s, u) == (2, 1): return [xprep]
            if 3 <= s <= 6: return [xcalc(4 * (s - 3) + 2 * u + i) for i in range(2)]
            return []
        npre3 = o.get("npre3B", 2)
        def on_free(s):
            if s < 2: return a2(s + 6) + w2(s + 6)
            if s == 2: return [g3.setup] + g3.wdma(0)
            if s == 3: return sum([g3.wdma(j) for j in range(1, min(npre3, 3))], [])
            if s == 4: return g3.wdma(3) if npre3 > 3 else []
            if s == 5: return sum([g3.wdma(j) for j in range(4, min(npre3, 6))], [])
            return []
        self.gemm_loop(S, 8, 2, reads, mfmas, lambda s: [("a2", s), ("w2", s), "xt"], lambda s: (((s + 2) % 6) // 2) * 2 * SL, [aA2] + aW2, bias, on_free, extra)
        self.stamp(S, 4)
        S(f"s_mov_b32 s{sOA}, {X1F:#x}")
        sa = R.get(4); P2 = [P[0], P[1], R.get(4), R.get(4)]
        for f in range(2):
            for b in range(2):
                A = acc[f] + 8 * b; X = xn + 16 * f + 8 * b; p = P2[2 * f + b]
                for i in range(4): S(f"v_pk_add_f32 {v(A+2*i,2)}, {v(A+2*i,2)}, {v(X+2*i,2)}")
                for i in range(4): S(f"v_cvt_pk_bf16_f32 v{p+i}, v{A+2*i}, v{A+2*i+1}")
                self.gstore(S, v(p, 4), vHo, SWS, f"s{sOA}", 1024 * (2 * f + b), "x1", "sc1")
        for i in range(16):
            A = v(acc[i >> 3] + 2 * (i & 7), 2)
            if i == 0:
                S(f"v_pk_mul_f32 {v(sa+2,2)}, {A}, {A}")
            else:
                S(f"v_pk_add_f32 {v(sa,2)}, {v(acc[0],2) if i == 1 else v(sa,2)}, {A}"); S(f"v_pk_fma_f32 {v(sa+2,2)}, {A}, {A}, {v(sa+2,2)}")
        S(f"s_lshl_b32 s{sT0}, s{sCQ}, 1"); S(f"s_and_b32 s{sT1}, s{sW}, 1"); S(f"s_add_u32 s{sT0}, s{sT0}, s{sT1}"); S(f"s_lshl_b32 s{sT0}, s{sT0}, 13"); S(f"s_add_u32 s{sT0}, s{sT0}, {PST:#x}")
        S(f"v_add_f32 v{sa}, v{sa}, v{sa+1}"); S(f"v_add_f32 v{sa+2}, v{sa+2}, v{sa+3}")
        S(f"v_lshrrev_b32 v{t0}, 5, v{vL}"); S(f"v_lshl_add_u32 v{t0}, v{t0}, 16, v{vSo}")
        S(f"v_permlane32_swap_b32 v{sa}, v{sa+2}"); S(f"v_add_f32 v{sa}, v{sa}, v{sa+2}")
        self.gstore(S, v(sa), t0, SWS, f"s{sT0}", 0, "x1", "sc1", "dword")
        self.publish(S, self.vT, self.vFme, 2, "x1")
        self.stamp(S, 5)
        R.put(fr[0], fr[1], xn, xp, xa, sa, P2[2], P2[3], mr, vA2, aA2, aW2[0], aW2[1], vSo, vHo, vq0, vq1, acc[0], acc[1], U, P[0], P[1], *vW)
        g3.run(npre3)
        self.hw = max(getattr(self, "hw", 0), R.hw)
        return S.lines

    def roleA(self):
        o = self.o
        S = Stream(); R = Regs(3, 256); vL = self.vL
        t0, t1, t2 = R.get(), R.get(), R.get()
        S("L_roleA:")
        S(f"s_sub_u32 s{sA}, s{sC}, 8")
        S(f"s_lshl_b32 s{sT0}, s{sW}, 5"); S(f"s_add_u32 s{sT1}, s{sR0}, s{sT0}")
        vX = self.xrow_voffs(S, R, 4, sT1, t0, t1, t2, False)
        vW = [R.get() for _ in range(2)]
        S(f"v_lshrrev_b32 v{t0}, 3, v{vL}"); S(f"s_lshl_b32 s{sT0}, s{sW}, 4"); S(f"v_add_u32 v{t0}, s{sT0}, v{t0}"); S(f"v_mul_u32_u24 v{t0}, 0xc00, v{t0}")
        S(f"v_bfe_u32 v{t1}, v{vL}, 4, 1"); S(f"v_lshlrev_b32 v{t1}, 2, v{t1}"); S(f"v_xor_b32 v{t1}, v{t1}, v{vL}"); S(f"v_and_b32 v{t1}, 7, v{t1}"); S(f"v_lshlrev_b32 v{t1}, 4, v{t1}")
        S(f"s_lshl_b32 s{sT0}, s{sA}, 7"); S(f"v_add3_u32 v{vW[0]}, v{t0}, v{t1}, s{sT0}")
        S(f"v_add_u32 v{vW[1]}, 24576, v{vW[0]}")
        S(f"s_lshl_b32 s{sM0}, s{sW}, 12"); S(f"s_mul_i32 s{sM1}, s{sW}, 6144"); S(f"s_add_u32 s{sM1}, s{sM1}, 16384")
        S("s_waitcnt lgkmcnt(0)")
        self.mk_srd(S, SX, 40, 2048 * 1024); self.mk_srd(S, SWF, 42, 512 * 3072)
        self.rest_srds(S)
        NB = 200
        S(f"s_lshl_b32 s{sT0}, s2, 2"); S(f"s_add_u32 s{sT0}, s{sT0}, s{sW}"); S(f"s_cmp_eq_u32 s{sT0}, 0x100"); S("s_cbranch_scc1 L_scan"); S("L_scan_back:")
        T = Stream(); T("L_scan:"); T(f"s_mov_b32 s{sT0}, {FL:#x}"); T(f"s_mov_b32 s{sT1}, {FG:#x}")
        for i in range(6): T(f"buffer_load_dwordx4 {v(NB+4*i,4)}, v{self.vL16}, {srd(SWS)}, s{sT0 if i < 4 else sT1} offen offset:{1024*(i&3)} sc1")
        T("s_branch L_scan_back"); self.tail += T.lines
        SL = 40960
        g1 = lambda st: (self.dma(S, sM0, (st % 4) * SL, 128 * st, SX, vX, ("g1", st)) + self.dma(S, sM1, (st % 4) * SL, 196608 * st, SWF, [vW[0]] * 3, ("g1", st), sreg=sOB)
                         + self.dma(S, sM1, (st % 4) * SL + 3072, 196608 * st, SWF, [vW[1]] * 3, ("g1", st), sreg=sOB))
        for st in range(4):
            for f in g1(st): f()
        self.code_prefetch(S, R)
        self.common_regs(S, R)
        S(f"s_lshl_b32 s{sT0}, s2, 2"); S(f"s_add_u32 s{sT0}, s{sT0}, s{sW}"); S(f"s_cmp_eq_u32 s{sT0}, 0x100"); S("s_cbranch_scc1 L_pick"); S("L_pick_back:")
        T = Stream(); T("L_pick:"); T(f"s_waitcnt vmcnt({len(S.vm)})")
        for i in range(24): T(f"v_lshrrev_b32 v{NB+i}, 3, v{NB+i}")
        T(f"s_mov_b32 s{sT0}, 0"); T("L_pick_l:"); T(f"s_add_u32 s{sT0}, s{sT0}, 1"); T(f"s_mov_b64 s[{sT1}:{sT2}], 0")
        for i in range(24):
            T(f"v_cmp_eq_u32 vcc, s{sT0}, v{NB+i}"); T("s_nop 1"); T(f"s_or_b64 s[{sT1}:{sT2}], s[{sT1}:{sT2}], vcc")
        T("s_cbranch_scc1 L_pick_l")
        T(f"s_lshl_b32 s{sT0}, s{sT0}, 3"); T(f"v_mov_b32 v{NB}, s{sT0}")
        T(f"buffer_store_dword v{NB}, v{self.vZ}, {srd(SDBG)}, 0 offen sc1"); T("s_branch L_pick_back"); self.tail += T.lines
        self.stamp(S, 0)
        aA = [R.get() for _ in range(4)]; aW = [R.get(), R.get()]
        S(f"s_lshr_b32 s{sT1}, s{sW}, 1"); S(f"s_lshl_b32 s{sT0}, s{sT1}, 13")
        S(f"v_and_b32 v{t0}, 31, v{vL}"); S(f"v_lshl_add_u32 v{t0}, v{t0}, 7, s{sT0}")
        S(f"v_bfe_u32 v{t1}, v{vL}, 1, 3"); S(f"v_lshrrev_b32 v{t2}, 5, v{vL}"); S(f"v_xor_b32 v{t1}, v{t1}, v{t2}")
        for k in range(4):
            S(f"s_xor_b32 s{sT0}, s{sT1}, {k}"); S(f"s_lshl_b32 s{sT0}, s{sT0}, 1")
            S(f"v_xor_b32 v{t2}, s{sT0}, v{t1}"); S(f"v_lshl_add_u32 v{aA[k]}, v{t2}, 4, v{t0}")
        self.trbase(S, t0, t1, 128, 24)
        S(f"v_bfe_u32 v{t1}, v{vL}, 3, 1"); S(f"s_and_b32 s{sT0}, s{sW}, 1"); S(f"v_xor_b32 v{t1}, s{sT0}, v{t1}"); S(f"v_lshl_add_u32 v{t0}, v{t1}, 6, v{t0}")
        S(f"s_mul_i32 s{sT0}, s{sT1}, 6144"); S(f"s_add_u32 s{sT2}, s{sT0}, 16384"); S(f"v_add_u32 v{aW[0]}, s{sT2}, v{t0}")
        S(f"s_sub_u32 s{sT2}, {16384+6144}, s{sT0}"); S(f"v_add_u32 v{aW[1]}, s{sT2}, v{t0}")
        sel = self.mk_sel(S, R, t0, t1)
        acc = [[R.get(16), R.get(16)] for _ in range(3)]; fr = [R.get(20), R.get(20)]; cs = [R.get(4) for _ in range(3)]
        g3 = G3(self, S, R, True, [0, 16, 48, 64, 80, 96, 128, 144], 36, [112, 0, 16, 48, 64, 80, 96, 128, 144], (t0, t1, t2))
        SCR = 32768
        vN, vSt = R.get(), R.get()
        bias = [0]
        def reads(s, k, st):
            b = fr[st]; base = (s % 4) * SL
            rA = lambda rf: self.rd(S, "ds_read_b128", v(b + 4 * rf, 4), aA[k], base + 4096 * rf, bias, ("A", s, k, rf))
            rW = lambda sg: [self.rd(S, "ds_read_b64_tr_b16", v(b + 8 + 4 * sg + 2 * r, 2), aW[k & 1], base + 6144 * (k & 2) + 1024 * sg + 512 * r, bias, ("W", s, k, sg)) for r in range(2)]
            return [rA(0)] + rW(0) + [rA(1)] + rW(1) + rW(2)
        def mfmas(s, k, st):
            out = []; b = fr[st]; z = s == 0 and k == 0
            for sg in range(3):
                W = v(b + 8 + 4 * sg, 4)
                for rf in range(2):
                    A = v(b + 4 * rf, 4); d = v(acc[sg][rf], 16)
                    out.append((f"v_mfma_f32_32x32x16_bf16 {d}, {W if sg == 0 else A}, {A if sg == 0 else W}, {0 if z else d}", [("A", s, k, rf), ("W", s, k, sg)], None))
                if k % 2 == 0: out.append((f"v_mfma_f32_16x16x32_bf16 {v(cs[sg],4)}, {v(sel,4)}, {W}, {0 if z else v(cs[sg],4)}", None, None))
            return out
        def zero():
            S(f"v_lshlrev_b32 v{t0}, 2, v0"); S(f"v_add_u32 v{t0}, {SCR}, v{t0}"); S.lds(f"ds_write_b32 v{t0}, v{self.vZ}", "zero")
        def st_fetch():
            self.poll_check(S, self.vP, self.vFgrp, self.vReq, "poll")
            S(f"s_and_b32 s{sT0}, s{sW}, 1"); S(f"s_lshl_b32 s{sT0}, s{sT0}, 6"); S(f"s_add_u32 s{sT0}, s{sT0}, s{sR0}"); S(f"s_lshl_b32 s{sT0}, s{sT0}, 2")
            S(f"s_lshr_b32 s{sT1}, s{sW}, 1"); S(f"s_lshl_b32 s{sT1}, s{sT1}, 13"); S(f"s_add_u32 s{sT0}, s{sT0}, s{sT1}")
            S(f"v_lshl_add_u32 v{vSt}, v{vL}, 2, s{sT0}"); S(f"s_lshl_b32 s{sT0}, s{sW}, 8")
            self.dma(S, sT0, SCR + 1024, ST, SWS, [vSt], "stt", "sc1", width="dword")[0]()
        def on_free(s):
            if s < 4: return g1(s + 4)
            if s == 4: return [zero, g3.setup] + g3.wdma(0) + g3.wdma(1)
            return g3.wdma(2 * s - 8) + g3.wdma(2 * s - 7)
        def extra(s, k):
            if (s, k) == (4, 0): return [lambda: self.nonce_issue(S, vN, self.vZ)]
            if (s, k) == (5, 2): return [lambda: self.nonce_check(S, vN, self.vZ), lambda: self.req(S, [f"v_cmp_gt_u32 vcc, 32, v{vL}"], 1), lambda: self.poll_issue(S, self.vP, self.vFgrp, "poll")]
            if (s, k) == (7, 0): return [st_fetch]
            return []
        self.gemm_loop(S, 8, 4, reads, mfmas, lambda s: [("g1", s)], lambda s: (s % 4) * SL, aA + aW, bias, on_free, extra, per=2)
        self.stamp(S, 1)
        R.put(*aA, *aW, fr[0], fr[1], *vX, *vW, vN, vSt)
        vS = R.get()
        S(f"s_and_b32 s{sT0}, s{sW}, 1"); S(f"s_lshl_b32 s{sT0}, s{sT0}, 7"); S(f"s_add_u32 s{sT0}, s{sT0}, {SCR}")
        S(f"v_and_b32 v{t0}, 31, v{vL}"); S(f"v_lshl_add_u32 v{vS}, v{t0}, 2, s{sT0}"); S(f"v_lshrrev_b32 v{t1}, 5, v{vL}")
        S(f"v_lshl_add_u32 v{t2}, v{t1}, 8, v{vS}")
        S(f"v_cndmask_b32_e64 v{cs[0]}, v{cs[0]}, v{cs[1]}, s[{sMK+6}:{sMK+7}]")
        S.lds(f"ds_add_f32 v{t2}, v{cs[0]}", "x"); S.lds(f"ds_add_f32 v{t2}, v{cs[2]} offset:512", "x")
        vB = R.get(); vR = R.get(); vC = R.get()
        S(f"v_lshl_add_u32 v{vC}, v{t1}, 4, s{sT0}")
        S(f"s_lshr_b32 s{sT0}, s{sW}, 1"); S(f"s_lshl_b32 s{sT0}, s{sT0}, 8"); S(f"s_add_u32 s{sT0}, s{sT0}, {SCR+1024}")
        S(f"v_lshl_add_u32 v{vB}, v{t1}, 4, s{sT0}"); S(f"v_lshl_add_u32 v{vR}, v{t0}, 2, s{sT0}")
        S.wait(vm="stt", lg="all"); S("s_barrier")
        ck = R.get(2); M = R.get(16); Rr = R.get(16)
        S.lds(f"ds_read2_b32 {v(ck,2)}, v{vS} offset0:64 offset1:128", "ck")
        def mread(rf, b):
            for q in (2 * b, 2 * b + 1):
                S.lds(f"ds_read_b128 {v(M+4*q,4)}, v{vB} offset:{128*rf+32*q}", ("m", rf, b)); S.lds(f"ds_read_b128 {v(Rr+4*q,4)}, v{vB} offset:{512+128*rf+32*q}", ("m", rf, b))
        mread(0, 0); mread(0, 1)
        for f in g3.wdma(6) + g3.wdma(7): f()
        U = R.get(8); pk = [R.get(4), R.get(4)]; pv = [R.get(4), R.get(4)]; ones = R.get(4); akv, az = R.get(16), R.get(16)
        for i in range(4): S(f"v_mov_b32 v{ones+i}, 0x3f803f80")
        pr = lambda b, i: v(b + 2 * i, 2)
        one, eps = f"s[{sONE}:{sONE+1}]", f"s[{sONE}:{sONE+1}]"
        S.wait(lg="ck")
        for rf in range(2):
            if rf == 1:
                R.put(acc[1][0], acc[2][0]); C = R.get(16); Kq = [R.get(4), R.get(4)]
                for q in range(4): S.lds(f"ds_read_b128 {v(C+4*q,4)}, v{vC} offset:{32*q}", "c")
                for r2 in range(2): S.lds(f"ds_read2_b32 {v(Kq[r2],2)}, v{vR} offset0:{32*r2} offset1:{128+32*r2}", "c")
            for b in range(2):
                S.wait(lg=("m", rf, b))
                A = acc[1][rf] + 8 * b; V = acc[2][rf] + 8 * b; m = M + 8 * b; r_ = Rr + 8 * b
                for i in range(4): S(f"v_pk_fma_f32 {pr(A,i)}, {pr(m,i)}, {v(ck,2)}, {pr(A,i)} op_sel_hi:[1,0,1] neg_lo:[1,0,0] neg_hi:[1,0,0]")
                for i in range(4): S(f"v_pk_fma_f32 {pr(V,i)}, {pr(m,i)}, {v(ck,2)}, {pr(V,i)} op_sel:[0,1,0] op_sel_hi:[1,1,1] neg_lo:[1,0,0] neg_hi:[1,0,0]")
                for i in range(4): S(f"v_pk_mul_f32 {pr(A,i)}, {pr(A,i)}, {pr(r_,i)}")
                for i in range(4): S(f"v_pk_mul_f32 {pr(V,i)}, {pr(V,i)}, {pr(r_,i)}")
                if rf == 0: mread(1, b)
                for i in range(4): S(f"v_pk_mul_f32 {pr(U,i)}, {pr(A,i)}, s[{sL2E}:{sL2E+1}] op_sel_hi:[1,0]")
                for i in range(8): S(f"v_exp_f32_e64 v{U+i}, v{U+i} clamp")
                for i in range(4): S(f"v_pk_add_f32 {pr(A,i)}, {pr(A,i)}, {one} op_sel_hi:[1,0]")
                for i in range(4): S(f"v_pk_add_f32 {pr(U,i)}, {pr(U,i)}, {eps} op_sel:[0,1] op_sel_hi:[1,1]")
                for i in range(8): S(f"v_max_f32 v{U+i}, v{U+i}, v{A+i}")
                for i in range(4): S(f"v_cvt_pk_bf16_f32 v{pk[b]+i}, v{U+2*i}, v{U+2*i+1}")
                for i in range(4): S(f"v_cvt_pk_bf16_f32 v{pv[b]+i}, v{V+2*i}, v{V+2*i+1}")
                z = rf == 0 and b == 0
                S(f"v_mfma_f32_32x32x16_bf16 {v(az,16)}, {v(pk[b],4)}, {v(ones,4)}, {0 if z else v(az,16)}")
                S(f"v_mfma_f32_32x32x16_bf16 {v(akv,16)}, {v(pk[b],4)}, {v(pv[b],4)}, {0 if z else v(akv,16)}")
        R.put(M, Rr, acc[1][1], acc[2][1])
        pq = R.get(16); vKo, vFg, vFgme = R.get(), R.get(), R.get()
        S(f"s_lshl_b32 s{sT0}, s{sA}, 1"); S(f"s_and_b32 s{sT1}, s{sW}, 1"); S(f"s_add_u32 s{sT0}, s{sT0}, s{sT1}"); S(f"s_lshl_b32 s{sT0}, s{sT0}, 5")
        S(f"s_lshl_b32 s{sT1}, s{sG}, 1"); S(f"s_add_u32 s{sT0}, s{sT0}, s{sT1}"); S(f"s_lshr_b32 s{sT1}, s{sW}, 1"); S(f"s_add_u32 s{sT0}, s{sT0}, s{sT1}")
        S(f"s_lshl_b32 s{sT0}, s{sT0}, 12"); S(f"s_add_u32 s{sT0}, s{sT0}, {KVP:#x}"); S(f"v_add_u32 v{vKo}, s{sT0}, v{self.vL16}")
        S(f"s_lshl_b32 s{sT0}, s{sA}, 8"); S(f"s_add_u32 s{sT0}, s{sT0}, {FG:#x}"); S(f"v_lshl_add_u32 v{vFg}, v{vL}, 2, s{sT0}")
        S(f"s_lshl_b32 s{sT1}, s{sG}, 2"); S(f"s_add_u32 s{sT1}, s{sT1}, s{sW}"); S(f"v_cmp_eq_u32 vcc, s{sT1}, v{vL}"); S(f"v_mov_b32 v{t0}, {OOB:#x}")
        S(f"v_cndmask_b32 v{vFgme}, v{t0}, v{vFg}, vcc")
        S.wait(lg="c")
        for rf in range(2):
            S(f"v_sub_f32 v{Kq[rf]}, 0, v{Kq[rf]}"); S(f"v_mul_f32 v{Kq[rf]+2}, s{sL2E}, v{Kq[rf]+1}")
        def qunit(rf, b):
            A = acc[0][rf] + 8 * b; K = Kq[rf]; c = C + 8 * b
            for i in range(4): S(f"v_pk_fma_f32 {pr(A,i)}, {pr(c,i)}, {v(K,2)}, {pr(A,i)} op_sel_hi:[1,0,1]")
            for i in range(4): S(f"v_pk_mul_f32 {pr(U,i)}, {pr(A,i)}, {v(K+2,2)} op_sel_hi:[1,0]")
            for i in range(8): S(f"v_exp_f32_e64 v{U+i}, v{U+i} clamp")
            for i in range(4): S(f"v_pk_fma_f32 {pr(A,i)}, {pr(A,i)}, {v(K,2)}, {one} op_sel:[0,1,0] op_sel_hi:[1,1,0]")
            for i in range(4): S(f"v_pk_add_f32 {pr(U,i)}, {pr(U,i)}, {eps} op_sel:[0,1] op_sel_hi:[1,1]")
            for i in range(8): S(f"v_max_f32 v{U+i}, v{U+i}, v{A+i}")
            for i in range(4): S(f"v_cvt_pk_bf16_f32 v{pq+8*rf+4*b+i}, v{U+2*i}, v{U+2*i+1}")
        qunit(0, 0)
        S(f"v_and_b32 v{t0}, 16, v{vL}"); S(f"v_cmp_eq_u32 vcc, 0, v{t0}")
        for i in range(16): S(f"v_cndmask_b32 v{akv+i}, v{az+i if i < 8 else akv+i}, v{akv+i if i < 8 else az+i}, vcc")
        for q in range(4): self.gstore(S, v(akv + 4 * q, 4), vKo, SWS, 0, 1024 * q, "kv", "sc1")
        qunit(0, 1); qunit(1, 0); qunit(1, 1)
        self.publish(S, self.vT, vFgme, 1, "kv")
        self.stamp(S, 5)
        R.put(acc[0][0], acc[0][1], cs[0], cs[1], cs[2], sel, vS, vB, vR, vC, ck, C, Kq[0], Kq[1], U, pk[0], pk[1], pv[0], pv[1], ones, akv, az, vKo)
        g3.pq, g3.vFg, g3.vFgme = pq, vFg, vFgme
        g3.run(8)
        self.hw = max(getattr(self, "hw", 0), R.hw)
        return S.lines

    def finish(self, S):
        if self.o.get("stamps"):
            S("s_waitcnt vmcnt(0)"); self.stamp(S, 14); S("s_waitcnt lgkmcnt(0)")
            S(f"s_lshl_b32 s{sT0}, s2, 2"); S(f"s_add_u32 s{sT0}, s{sT0}, s{sW}"); S(f"s_lshl_b32 s{sT0}, s{sT0}, 7"); S(f"s_add_u32 s{sT0}, s{sT0}, {STAMPS:#x}")
            for i, r in enumerate(STAMP_REGS):
                S(f"v_mov_b32 v4, s{r}"); S(f"buffer_store_dword v4, v{self.vZ}, {srd(SWS)}, s{sT0} offen offset:{4*i}"); S("s_nop 1")
        S("s_endpgm")

    def build(self):
        S = Stream(); self.prologue(S)
        lines = S.lines + self.roleB() + self.roleA() + self.tail + ["L_exit:", "s_endpgm"]
        lines, added = fix_hazards(lines)
        head = open(self.o["ref"]).read().split("; Override launch")[0]
        out = [head.rstrip(), "; @launch grid=(256,1,1) block=(256,1,1) lds=163840", '.amdgcn_target "amdgcn-amd-amdhsa--gfx950"', ".text",
               f".globl {KNAME}", ".p2align 8", f".type {KNAME},@function", f"{KNAME}:"]
        out += [l if l.endswith(":") else "    " + l for l in lines]
        out += [".p2align 9", "L_code_end:" if False else "", '.section .rodata,"a"', ".p2align 6", f".amdhsa_kernel {KNAME}",
                "  .amdhsa_next_free_vgpr 384", "  .amdhsa_next_free_sgpr 102", "  .amdhsa_accum_offset 256", "  .amdhsa_group_segment_fixed_size 0",
                "  .amdhsa_kernarg_size 88", "  .amdhsa_user_sgpr_count 2", "  .amdhsa_user_sgpr_kernarg_segment_ptr 1", "  .amdhsa_system_sgpr_workgroup_id_x 1",
                ".end_amdhsa_kernel"]
        txt = "\n".join(out).replace(".p2align 9\n\n", "L_code_end:\n") + "\n"
        sys.stderr.write(f"instructions {len(lines)}, wait states added {added}, vgpr high water {self.hw}\n")
        return txt

class G3:
    def __init__(self, g, S, R, roleA, wbase, scr, ring4, temps):
        self.g, self.S, self.R, self.A = g, S, R, roleA
        self.wb = [1024 * x for x in wbase]; self.scr = 1024 * scr; self.ring4 = [1024 * x for x in ring4]
        self.t = temps
        self.vW = [R.get() for _ in range(4)]
        self.vW4 = [R.get() for _ in range(4)]
        self.sM = 3
    def setup(self):
        g, S = self.g, self.S; t0, t1, t2 = self.t; vL = g.vL
        if self.A:
            S(f"s_mul_i32 s{sT2}, s{sA}, 192"); S(f"s_add_u32 s{sT2}, s{sT2}, 2048"); S(f"s_and_b32 s{sT2}, s{sT2}, 0xffffff80")
        else:
            S(f"s_lshl_b32 s{sT2}, s{sC}, 8")
        class Fix:
            def __init__(s, l): s.l = list(l)
            def get(s): return s.l.pop(0)
        g.w256_voffs(S, Fix(self.vW), 3584, sT2, t0, t1)
        S(f"s_lshl_b32 s{self.sM}, s{sW}, 12")
        S(f"v_lshrrev_b32 v{t0}, 3, v{vL}"); S(f"s_lshl_b32 s{sT0}, s{sW}, 5"); S(f"v_add_u32 v{t0}, s{sT0}, v{t0}")
        S(f"v_bfe_u32 v{t1}, v{vL}, 4, 1"); S(f"v_lshlrev_b32 v{t1}, 2, v{t1}"); S(f"v_xor_b32 v{t1}, v{t1}, v{vL}"); S(f"v_and_b32 v{t1}, 7, v{t1}"); S(f"v_lshlrev_b32 v{t1}, 4, v{t1}")
        S(f"v_lshl_add_u32 v{t0}, v{t0}, 10, v{t1}"); S(f"s_lshl_b32 s{sT0}, s{sCT}, 7"); S(f"v_add_u32 v{self.vW4[0]}, s{sT0}, v{t0}")
        for j in range(1, 4): S(f"v_add_u32 v{self.vW4[j]}, {7168*j}, v{self.vW4[0]}")
        S(f"s_lshr_b32 s{sSPL}, s{sW}, 1"); S(f"s_lshl_b32 s{sSPL}, s{sSPL}, 16")
    def wdma(self, st):
        return self.g.dma(self.S, self.sM, self.wb[st], 64 * 3584 * st, SW3, self.vW, ("w3", st), sreg=sOB)
    def w4dma(self, s):
        if s < 6: rs, so = SW4, (1024 + 128 * s) * 1024
        elif s < 10: rs, so = SW4, (sSPL, 256 * (s - 6) * 1024)
        elif s < 14: rs, so = SW4, (sSPL, (256 * (s - 10) + 64) * 1024)
        else: rs, so = SWO, 128 * (s - 14) * 1024
        return self.g.dma(self.S, self.sM, self.ring4[s % 9], so, rs, self.vW4, ("w4", s), sreg=sOB)

    def run(self, npre):
        g, S, R, isA = self.g, self.S, self.R, self.A; t0, t1, t2 = self.t; vL = g.vL; o = g.o
        nf = 3 if isA else 4
        sP = sT2 + 0
        vA = [R.get(), R.get()]; vPs = R.get(); aW = [[R.get() for _ in range(nf)] for _ in range(2)]
        S(f"s_and_b32 s{sT1}, s{sW}, 1") if isA else S(f"s_lshr_b32 s{sT1}, s{sW}, 1")
        S(f"s_lshr_b32 s{sT0}, s{sR0}, 5"); S(f"s_add_u32 s{sT0}, s{sT0}, s{sW}"); S(f"s_lshl_b32 s{sT0}, s{sT0}, 15"); S(f"s_add_u32 s{sT0}, s{sT0}, {X1F:#x}")
        S(f"s_lshl_b32 s{sT2}, s{sT1}, 10"); S(f"s_add_u32 s{sOA}, s{sT0}, s{sT2}"); S(f"v_add_u32 v{vA[0]}, s{sOA}, v{g.vL16}")
        S(f"s_sub_u32 s{sOA}, s{sT0}, s{sT2}"); S(f"s_add_u32 s{sOA}, s{sOA}, 1024"); S(f"v_add_u32 v{vA[1]}, s{sOA}, v{g.vL16}")
        S(f"s_lshl_b32 s{sT0}, s{sW}, 5"); S(f"s_add_u32 s{sT0}, s{sT0}, s{sR0}"); S(f"s_lshl_b32 s{sT0}, s{sT0}, 2")
        S(f"v_and_b32 v{t0}, 31, v{vL}"); S(f"v_lshl_add_u32 v{vPs}, v{t0}, 2, s{sT0}"); S(f"v_lshrrev_b32 v{t0}, 5, v{vL}"); S(f"v_lshl_add_u32 v{vPs}, v{t0}, 16, v{vPs}")
        S(f"v_lshrrev_b32 v{t0}, 4, v{vL}"); S(f"v_bfe_u32 v{t1}, v{vL}, 1, 1"); S(f"v_lshl_add_u32 v{t0}, v{t0}, 1, v{t1}")
        g.req(S, [f"v_cmp_eq_u32 vcc, s{sW}, v{t0}"], 2)
        g.poll_issue(S, g.vP, g.vFgrp, "poll")
        g.trbase(S, t0, t1, 256, 4)
        S(f"v_bfe_u32 v{t1}, v{vL}, 2, 2"); S(f"s_lshl_b32 s{sT2}, s{sT1}, 12"); S(f"s_sub_u32 s{sOA}, 4096, s{sT2}")
        S(f"s_and_b32 s{sT0}, s{sA if isA else sW}, 1")
        for f in range(nf):
            if isA: S(f"s_add_u32 s{sT1}, s{sT0}, {f}")
            else: S(f"s_xor_b32 s{sT1}, s{sT0}, {f}")
            S(f"v_xor_b32 v{t2}, s{sT1}, v{t1}"); S(f"v_lshl_add_u32 v{t2}, v{t2}, 6, v{t0}")
            S(f"v_add_u32 v{aW[0][f]}, s{sT2}, v{t2}"); S(f"v_add_u32 v{aW[1][f]}, s{sOA}, v{t2}")
        sel = g.mk_sel(S, R, t0, t1)
        S(f"v_lshlrev_b32 v{t0}, 2, v0"); S(f"v_add_u32 v{t0}, {self.scr}, v{t0}"); S.lds(f"ds_write_b32 v{t0}, v{g.vZ}", "zero")
        g.poll_check(S, g.vP, g.vFgrp, g.vReq, "poll")
        g.stamp(S, 6)
        def aload(st):
            out = []
            for k in range(4):
                def f(k=k):
                    if k == 0: S(f"s_mov_b32 s{sOA}, {4096*st}")
                    g.gload(S, a(16 * st + 4 * k, 4), vA[k & 1], SWS, f"s{sOA}", 1024 * (k & 2), ("a3", st), "sc1")
                f.tag = ("a3", st)
                out.append(f)
            return out
        ps = R.get(8)
        for st in range(3):
            for f in aload(st): f()
            if st == 0:
                for p in range(8):
                    S(f"s_mov_b32 s{sT0}, {PST+8192*p:#x}"); g.gload(S, v(ps + p), vPs, SWS, f"s{sT0}", 0, "ps", "sc1", "dword")
            if npre <= st + 1 < 8:
                for f in self.wdma(st + 1): f()
        acc = [R.get(16) for _ in range(nf)]; fr = [R.get(4 * nf), R.get(4 * nf)]
        csf = (0, 1, 2) if isA else (0, 2)
        cs = {f: R.get(4) for f in csf}; K = R.get(4)
        bias = [0]
        def reads(s, k, st):
            return [g.rd(S, "ds_read_b64_tr_b16", v(fr[st] + 4 * f + 2 * r, 2), aW[k & 1][f], self.wb[s] + 4096 * (k & 2) + 2048 * r, bias, ("W", s, k, f)) for f in range(nf) for r in range(2)]
        def mfmas(s, k, st):
            out = []; z = s == 0 and k == 0
            for f in range(nf):
                W = v(fr[st] + 4 * f, 4); d = v(acc[f], 16)
                out.append((f"v_mfma_f32_32x32x16_bf16 {d}, {W}, {a(16*s+4*k,4)}, {0 if z else d}", [("W", s, k, f)], [("a3", s)]))
                if k % 2 == 0 and f in cs: out.append((f"v_mfma_f32_16x16x32_bf16 {v(cs[f],4)}, {v(sel,4)}, {W}, {0 if z else v(cs[f],4)}", None, None))
            return out
        def stats1():
            S.wait(vm="ps")
            for i in range(4): S(f"v_add_f32 v{ps+i}, v{ps+i}, v{ps+4+i}")
            S(f"v_add_f32 v{ps}, v{ps}, v{ps+2}"); S(f"v_add_f32 v{ps+1}, v{ps+1}, v{ps+3}"); S(f"v_add_f32 v{ps}, v{ps}, v{ps+1}"); S(f"v_mov_b32 v{ps+1}, v{ps}")
        def stats2():
            S(f"v_permlane32_swap_b32 v{ps}, v{ps+1}"); g.ln_stats(S, ps, ps + 1, ps + 2, ps + 3, ps + 4)
        def stats3(): g.gelu_consts(S, K, ps + 4, ps + 2, ps + 5)
        w4plan = o.get("w4planA" if isA else "w4planB", {3: [0, 1], 4: [2, 3], 5: [4, 5], 6: [6]})
        def on_free(s): return sum([self.w4dma(j) for j in w4plan.get(s, [])], [])
        def extra(s, k):
            out = []
            if k == 0:
                if s + 3 < 8: out += aload(s + 3)
                if npre <= s + 4 < 8: out += self.wdma(s + 4)
            if (s, k) == (2, 1): out += [stats1]
            if (s, k) == (2, 2): out += [stats2]
            if (s, k) == (3, 1): out += [stats3]
            if isA and (s, k) == (5, 0): out += [lambda: S(f"v_mov_b32 v{g.vReq}, 1"), lambda: g.poll_issue(S, g.vP, self.vFg, "poll")]
            return out
        allW = aW[0] + aW[1]
        g.gemm_loop(S, 8, 4, reads, mfmas, lambda s: [("w3", s)], lambda s: self.wb[s] & ~0xffff, allW, bias, on_free, extra)
        g.stamp(S, 7)
        R.put(*allW, fr[0], fr[1], *vA, vPs, ps, *self.vW)
        vC = [R.get(), R.get()]; vG = [R.get(), R.get()]
        S(f"v_and_b32 v{t0}, 31, v{vL}"); S(f"v_lshrrev_b32 v{t1}, 5, v{vL}")
        if isA:
            S(f"s_lshr_b32 s{sT0}, s{sW}, 1"); S(f"s_lshl_b32 s{sT0}, s{sT0}, 9"); S(f"s_add_u32 s{sT0}, s{sT0}, {self.scr}")
            S(f"v_lshl_add_u32 v{t2}, v{vL}, 2, s{sT0}")
            S(f"v_cndmask_b32_e64 v{cs[0]}, v{cs[0]}, v{cs[1]}, s[{sMK+6}:{sMK+7}]")
            S.lds(f"ds_add_f32 v{t2}, v{cs[0]}", "x"); S.lds(f"ds_add_f32 v{t2}, v{cs[2]} offset:256", "x")
            S(f"v_lshlrev_b32 v{vC[0]}, 4, v{t1}"); S(f"v_add_u32 v{vC[0]}, {self.scr}, v{vC[0]}"); S(f"v_add_u32 v{vC[1]}, 128, v{vC[0]}")
            S(f"s_mul_i32 s{sT1}, s{sA}, 6144")
        else:
            S(f"s_and_b32 s{sT1}, s{sW}, 1"); S(f"s_lshl_b32 s{sT0}, s{sT1}, 7"); S(f"s_add_u32 s{sT0}, s{sT0}, {self.scr}")
            S(f"v_lshl_add_u32 v{t2}, v{t0}, 2, s{sT0}"); S(f"v_lshl_add_u32 v{t2}, v{t1}, 8, v{t2}")
            S(f"v_cndmask_b32_e64 v{cs[0]}, v{cs[0]}, v{cs[2]}, s[{sMK+6}:{sMK+7}]")
            S.lds(f"ds_add_f32 v{t2}, v{cs[0]}", "x")
            S(f"v_lshl_add_u32 v{vC[0]}, v{t1}, 4, s{sT0}"); S(f"v_xor_b32 v{vC[1]}, 128, v{vC[0]}")
            S(f"s_lshl_b32 s{sT1}, s{sT1}, 11"); S(f"s_lshl_b32 s{sT2}, s{sC}, 12"); S(f"s_add_u32 s{sT1}, s{sT1}, s{sT2}"); S(f"s_add_u32 s{sT1}, s{sT1}, {48*1024}")
        S(f"s_lshr_b32 s{sT0}, s{sR0}, 5"); S(f"s_add_u32 s{sT0}, s{sT0}, s{sW}"); S(f"s_mul_i32 s{sT0}, s{sT0}, {144*1024}"); S(f"s_add_u32 s{sT0}, s{sT0}, s{sT1}"); S(f"s_add_u32 s{sT0}, s{sT0}, {GO:#x}")
        S(f"v_add_u32 v{vG[0]}, s{sT0}, v{g.vL16}")
        if isA: S(f"v_add_u32 v{vG[1]}, 2048, v{vG[0]}")
        else: S(f"v_xor_b32 v{vG[1]}, 2048, v{vG[0]}")
        S.wait(lg="all"); S("s_barrier")
        C = [R.get(16), R.get(16)]; U = R.get(8); P = [R.get(4), R.get(4)]
        def cread(f):
            for q in range(4): S.lds(f"ds_read_b128 {v(C[f&1]+4*q,4)}, v{vC[f&1]} offset:{256*(f>>1)+32*q}", ("c", f))
        def block(f):
            S.wait(lg=("c", f))
            for b in range(2):
                g.gelu_unit(S, acc[f] + 8 * b, C[f & 1] + 8 * b, K, U, P[b])
                if b == 0: S(f"s_mov_b32 s{sOA}, {(4096 if isA else 32768)*(f>>1)}")
                g.gstore(S, v(P[b], 4), vG[f & 1], SWS, f"s{sOA}", 1024 * b, ("g", f), "sc1")
            if f + 2 < nf: cread(f + 2)
        cread(0); cread(1)
        issued = set(sum(w4plan.values(), []))
        rest4 = [j for j in range(9) if j not in issued]
        g4 = G4(self)
        if isA:
            g.poll_check(S, g.vP, self.vFg, g.vReq, "poll")
            kr = R.get(16); vK = R.get(2)
            S(f"s_lshl_b32 s{sT0}, s{sA}, 1"); S(f"s_lshr_b32 s{sT1}, s{sG}, 3"); S(f"s_add_u32 s{sT0}, s{sT0}, s{sT1}")
            S(f"s_bfe_u32 s{sT1}, s{sG}, 0x10002"); S(f"s_and_b32 s{sT2}, s{sG}, 3"); S(f"s_lshl_b32 s{sT2}, s{sT2}, 2"); S(f"s_add_u32 s{sT2}, s{sT2}, s{sW}"); S(f"s_lshl_b32 s{sT2}, s{sT2}, 6")
            S(f"v_and_b32 v{t0}, 3, v{vL}"); S(f"v_lshl_add_u32 v{t0}, v{t0}, 4, s{sT2}")
            S(f"s_lshl_b32 s{sOA}, s{sT0}, 17"); S(f"s_lshl_b32 s{sT2}, s{sT1}, 11"); S(f"s_add_u32 s{sOA}, s{sOA}, s{sT2}"); S(f"s_add_u32 s{sOA}, s{sOA}, {KVP:#x}"); S(f"s_add_u32 s{sOB}, s{sOA}, 0x10000")
            S(f"v_lshrrev_b32 v{t1}, 2, v{vL}"); S(f"v_lshl_add_u32 v{vK}, v{t1}, 12, v{t0}")
            for it in range(2):
                for u in range(2): g.gload(S, v(kr + 8 * it + 4 * u, 4), vK, SWS, f"s{sOB if it else sOA}", 1024 * u, "kr", "sc1")
            S(f"s_lshl_b32 s{sT0}, s{sT0}, 1"); S(f"s_add_u32 s{sT0}, s{sT0}, s{sT1}"); S(f"s_lshl_b32 s{sT0}, s{sT0}, 10"); S(f"s_add_u32 s{sT0}, s{sT0}, {KVF:#x}")
            S(f"v_lshrrev_b32 v{t1}, 4, v{vL}"); S(f"v_lshl_add_u32 v{t0}, v{t1}, 2, v{t0}"); S(f"v_add_u32 v{t0}, s{sT0}, v{t0}")
            S(f"v_and_b32 v{t1}, 12, v{vL}"); S(f"v_cmp_eq_u32 vcc, 0, v{t1}"); S(f"v_mov_b32 v{t1}, {OOB:#x}"); S(f"v_cndmask_b32 v{vK+1}, v{t1}, v{t0}, vcc")
            for j in rest4:
                for f in self.w4dma(j): f()
            g4.prep()
            block(0)
            S.wait(vm="kr")
            for i in range(4): S(f"v_pk_add_f32 {v(kr+2*i,2)}, {v(kr+2*i,2)}, {v(kr+8+2*i,2)}")
            for i in range(4): S(f"v_permlane32_swap_b32 v{kr+i}, v{kr+4+i}")
            for i in range(4): S(f"v_add_f32 v{kr+i}, v{kr+i}, v{kr+4+i}")
            for i in range(2): S(f"v_permlane16_swap_b32 v{kr+i}, v{kr+2+i}")
            for i in range(2): S(f"v_add_f32 v{kr+i}, v{kr+i}, v{kr+2+i}")
            for sh in (4, 8):
                for i in range(2): S(f"v_add_f32_dpp v{kr+i}, v{kr+i}, v{kr+i} row_ror:{sh} row_mask:0xf bank_mask:0xf")
            S(f"v_cvt_pk_bf16_f32 v{kr}, v{kr}, v{kr+1}")
            g.gstore(S, v(kr), vK + 1, SWS, 0, 0, "kvf", "sc1", "dword")
            block(1)
            g.publish(S, g.vT, self.vFgme, 2, "kvf")
            block(2)
            g.stamp(S, 8)
            S(f"s_and_b32 s{sT0}, s{sW}, 1")
            g.req(S, [f"v_lshrrev_b32 v{t0}, 5, v{vL}", f"v_cmp_eq_u32 vcc, s{sT0}, v{t0}"], 2)
            g.publish(S, g.vT, g.vFme, 3, [("g", 0), ("g", 1), ("g", 2)])
            g.poll_issue(S, g.vP, self.vFg, "poll"); g.poll_check(S, g.vP, self.vFg, g.vReq, "poll")
            S(f"s_and_b32 s{sT0}, s{sW}, 1")
            S(f"s_lshl_b32 s{sT1}, s{sA}, 1"); S(f"s_add_u32 s{sT1}, s{sT1}, s{sT0}"); S(f"s_lshl_b32 s{sT1}, s{sT1}, 11"); S(f"s_add_u32 s{sOA}, s{sT1}, {KVF:#x}")
            for hd in range(2): g.gload(S, v(kr + 4 * hd, 4), g.vL16, SWS, f"s{sOA}", 1024 * hd, "u", "sc1")
            g.poll_issue(S, g.vP, g.vFgrp, "poll")
            S(f"s_lshr_b32 s{sT0}, s{sR0}, 5"); S(f"s_and_b32 s{sT2}, s{sW}, 2"); S(f"s_add_u32 s{sT0}, s{sT0}, s{sT2}"); S(f"s_mul_i32 s{sT0}, s{sT0}, {144*1024}")
            S(f"s_add_u32 s{sT0}, s{sT0}, s{sT1}"); S(f"s_add_u32 s{sT0}, s{sT0}, {GO+112*1024:#x}"); S(f"v_add_u32 v{vK}, s{sT0}, v{g.vL16}"); S(f"v_add_u32 v{vK+1}, {144*1024}, v{vK}")
            S.wait(vm="u")
            D = [acc[0], acc[1], acc[2], C[0]]
            for rf in range(2):
                for hd in range(2): S(f"v_mfma_f32_32x32x16_bf16 {v(D[2*rf+hd],16)}, {v(kr+4*hd,4)}, {v(self.pq+8*rf+4*hd,4)}, 0")
            g.poll_check(S, g.vP, g.vFgrp, g4.req[0], "poll")
            g4.first_loads()
            for rf in range(2):
                for hd in range(2):
                    d = D[2 * rf + hd]; num = d + 8 * hd; den = d + 8 - 8 * hd
                    S(f"v_add_f32 v{den}, s{sONE+1}, v{den}"); S(f"v_rcp_f32 v{den}, v{den}")
                    for i in range(4): S(f"v_pk_mul_f32 {v(num+2*i,2)}, {v(num+2*i,2)}, {v(den,2)} op_sel_hi:[1,0]")
                    for i in range(4): S(f"v_cvt_pk_bf16_f32 v{P[hd]+i}, v{num+2*i}, v{num+2*i+1}")
                    g.gstore(S, v(P[hd], 4), vK + rf, SWS, 0, 1024 * hd, "o", "sc1")
            late = [lambda: g.publish(S, g.vT, g.vFme, 4, "o")]
            R.put(kr, vK, self.pq)
        else:
            for j in rest4:
                for f in self.w4dma(j): f()
            g4.prep()
            block(0); block(1); block(2)
            g.publish(S, g.vT, g.vFme, 3, [("g", 0), ("g", 1)])
            g.poll_issue(S, g.vP, g.vFgrp, "poll")
            block(3)
            g.stamp(S, 8)
            g.poll_check(S, g.vP, g.vFgrp, g4.req[0], "poll")
            g4.first_loads()
            late = [lambda: g.publish(S, g.vT, g.vFme, 4, [("g", 2), ("g", 3)])]
        R.put(*acc, *cs.values(), K, C[0], C[1], U, P[0], P[1], *vC, *vG, sel)
        g4.run(late)

class G4:
    DA = 3
    def __init__(self, g3):
        self.g3 = g3; R = g3.R
        self.vA = R.get(); self.vX = [R.get(), R.get()]; self.req = [R.get() for _ in range(4)]
        self.x1 = R.get(8); self.x = R.get(8)
    def prep(self):
        g3 = self.g3; g, S = g3.g, g3.S; t0, t1, t2 = g3.t; vL = g.vL
        S(f"s_lshl_b32 s{sT1}, s{sRH4}, 1"); S(f"s_and_b32 s{sT0}, s{sW}, 1"); S(f"s_add_u32 s{sT1}, s{sT1}, s{sT0}")
        S(f"s_lshr_b32 s{sT0}, s{sR0}, 5"); S(f"s_add_u32 s{sT0}, s{sT0}, s{sT1}")
        S(f"s_lshl_b32 s{sOA}, s{sT0}, 15"); S(f"s_lshl_b32 s{sT2}, s{sCT}, 12"); S(f"s_add_u32 s{sOA}, s{sOA}, s{sT2}")
        S(f"s_lshr_b32 s{sT2}, s{sW}, 1"); S(f"s_lshl_b32 s{sT2}, s{sT2}, 11"); S(f"s_add_u32 s{sOA}, s{sOA}, s{sT2}"); S(f"s_add_u32 s{sOA}, s{sOA}, {X1F:#x}")
        for b in range(2): g.gload(S, v(self.x1 + 4 * b, 4), g.vL16, SWS, f"s{sOA}", 1024 * b, "x1i", "sc1")
        S(f"s_mul_i32 s{sT0}, s{sT0}, {144*1024}"); S(f"s_lshl_b32 s{sT2}, s{sT2}, 1"); S(f"s_add_u32 s{sT0}, s{sT0}, s{sT2}"); S(f"s_add_u32 s{sT0}, s{sT0}, {GO:#x}")
        S(f"v_add_u32 v{self.vA}, s{sT0}, v{g.vL16}")
        S(f"s_lshl_b32 s{sT0}, s{sRH4}, 2"); S(f"s_add_u32 s{sT0}, s{sT0}, s{sW}"); S(f"s_lshl_b32 s{sT0}, s{sT0}, 4"); S(f"s_add_u32 s{sT0}, s{sT0}, s{sR0}"); S(f"s_lshl_b32 s{sT0}, s{sT0}, 10")
        S(f"s_lshl_b32 s{sT2}, s{sCT}, 7"); S(f"s_add_u32 s{sT0}, s{sT0}, s{sT2}")
        S(f"v_lshrrev_b32 v{t0}, 3, v{vL}"); S(f"v_and_b32 v{t1}, 7, v{vL}"); S(f"v_lshlrev_b32 v{t1}, 4, v{t1}"); S(f"v_lshl_add_u32 v{t0}, v{t0}, 10, v{t1}")
        S(f"v_add_u32 v{self.vX[0]}, s{sT0}, v{t0}"); S(f"v_add_u32 v{self.vX[1]}, 8192, v{self.vX[0]}")
        for p in range(2): g.gload(S, v(self.x + 4 * p, 4), self.vX[p], SX, 0, 0, "xi")
        S(f"v_and_b32 v{t0}, 35, v{vL}"); S(f"s_add_u32 s{sT0}, s{sT1}, 32")
        S(f"v_cmp_eq_u32 vcc, s{sT0}, v{t0}"); S(f"v_cndmask_b32_e64 v{self.req[0]}, 0, 3, vcc")
        S(f"v_cmp_eq_u32 vcc, s{sT1}, v{t0}"); S(f"v_cndmask_b32_e64 v{self.req[1]}, 0, 3, vcc"); S(f"v_cndmask_b32_e64 v{self.req[2]}, 0, 4, vcc")
        S(f"v_and_b32 v{t0}, 34, v{vL}"); S(f"s_and_b32 s{sT0}, s{sT0}, 34")
        S(f"v_cmp_eq_u32 vcc, s{sT0}, v{t0}"); S(f"v_cndmask_b32_e64 v{self.req[3]}, 0, 4, vcc")
    def aload(self, s):
        g, S = self.g3.g, self.g3.S; out = []
        for k in range(4):
            def f(k=k):
                if k == 0: S(f"s_mov_b32 s{sOA}, {8192*s}")
                g.gload(S, a(16 * (s % 8) + 4 * k, 4), self.vA, SWS, f"s{sOA}", 1024 * k, ("a4", s), "sc1")
            f.tag = ("a4", s)
            out.append(f)
        return out
    def first_loads(self):
        for s in range(self.DA):
            for f in self.aload(s): f()
    def run(self, late):
        g3 = self.g3; g, S, R = g3.g, g3.S, g3.R; t0, t1, t2 = g3.t; vL = g.vL; DA = self.DA
        aW = [R.get(), R.get()]; acc = [R.get(16), R.get(16)]; fr = [R.get(16), R.get(16)]
        g.trbase(S, t0, t1, 128, 4)
        S(f"s_lshr_b32 s{sT0}, s{sW}, 1"); S(f"v_bfe_u32 v{t1}, v{vL}, 3, 1"); S(f"v_xor_b32 v{t1}, s{sT0}, v{t1}"); S(f"v_lshl_add_u32 v{t0}, v{t1}, 6, v{t0}")
        S(f"s_lshl_b32 s{sT0}, s{sT0}, 13"); S(f"v_add_u32 v{aW[0]}, s{sT0}, v{t0}"); S(f"v_xor_b32 v{aW[1]}, 64, v{aW[0]}")
        S.wait(vm="x1i")
        for i in range(8): S(f"v_lshlrev_b32 v{acc[0]+2*i}, 16, v{self.x1+i}"); S(f"v_and_b32 v{acc[0]+2*i+1}, 0xffff0000, v{self.x1+i}")
        g.stamp(S, 9)
        bias = [0]
        def reads(s, u, st):
            return [g.rd(S, "ds_read_b64_tr_b16", v(fr[st] + 8 * i + 4 * f + 2 * r, 2), aW[f], g3.ring4[s % 9] + 2048 * (2 * u + i) + 1024 * r, bias, ("W", s, 2 * u + i, f))
                    for i in range(2) for f in range(2) for r in range(2)]
        def mfmas(s, u, st):
            out = []
            for i in range(2):
                k = 2 * u + i
                for f in range(2):
                    d = v(acc[f], 16)
                    out.append((f"v_mfma_f32_32x32x16_bf16 {d}, {v(fr[st]+8*i+4*f,4)}, {a(16*(s%8)+4*k,4)}, {0 if (s == 0 and k == 0 and f == 1) else d}", [("W", s, k, f)], [("a4", s)]))
            return out
        on_free = lambda s: g3.w4dma(s + 9) if s + 9 < 18 else []
        xf = R.get(16); wa = R.get(8); ra = R.get(2)
        def eaddr():
            S(f"s_and_b32 s{sT0}, s{sW}, 1"); S(f"s_lshl_b32 s{sT0}, s{sT0}, 13"); S(f"s_lshr_b32 s{sT1}, s{sW}, 1"); S(f"s_mul_i32 s{sT1}, s{sT1}, {16384+128}"); S(f"s_add_u32 s{sT0}, s{sT0}, s{sT1}")
            S(f"v_and_b32 v{t0}, 31, v{vL}"); S(f"v_lshl_add_u32 v{t0}, v{t0}, 8, s{sT0}"); S(f"v_lshrrev_b32 v{t1}, 5, v{vL}"); S(f"v_xor_b32 v{t1}, v{t1}, v{vL}"); S(f"v_and_b32 v{t1}, 7, v{t1}")
        def eaddr2(q):
            def f():
                S(f"v_xor_b32 v{t2}, {2*q}, v{t1}"); S(f"v_lshl_add_u32 v{wa+q}, v{t2}, 4, v{t0}"); S(f"v_xor_b32 v{wa+4+q}, 128, v{wa+q}")
            return f
        def eaddr3():
            S(f"v_lshrrev_b32 v{t0}, 3, v{vL}"); S(f"v_and_b32 v{t1}, 7, v{vL}"); S(f"v_lshlrev_b32 v{t1}, 1, v{t1}"); S(f"v_xor_b32 v{t1}, v{t1}, v{t0}")
            S(f"s_lshl_b32 s{sT0}, s{sW}, 12"); S(f"v_lshl_add_u32 v{t0}, v{t0}, 8, s{sT0}"); S(f"v_lshl_add_u32 v{ra}, v{t1}, 4, v{t0}"); S(f"v_xor_b32 v{ra+1}, 16, v{ra}")
        def xun(i):
            def f():
                S.wait(vm="xi"); S(f"v_lshlrev_b32 v{xf+2*i}, 16, v{self.x+i}"); S(f"v_and_b32 v{xf+2*i+1}, 0xffff0000, v{self.x+i}")
            return f
        def extra(s, u):
            out = []
            if u == 0:
                if s == 1: out += late
                if s + DA in (6, 10, 14): out += [lambda: g.poll_check(S, g.vP, g.vFgrp, self.req[(s + DA - 2) // 4], "poll")]
                if s + 2 * DA in (6, 10, 14): out += [lambda: g.poll_issue(S, g.vP, g.vFgrp, "poll")]
                if s + DA < 18: out += self.aload(s + DA)
            if (s, u) == (15, 0): out += [eaddr] + [eaddr2(q) for q in range(4)] + [eaddr3]
            if s == 16: out += [xun(4 * u + i) for i in range(4)]
            return out
        g.gemm_loop(S, 18, 2, reads, mfmas, lambda s: [("w4", s)], lambda s: g3.ring4[s % 9] & ~0xffff, aW, bias, on_free, extra)
        g.stamp(S, 10)
        S("s_barrier")
        for f in range(2):
            for q in range(4): S.lds(f"ds_write_b128 v{wa+4*f+q}, {v(acc[f]+4*q,4)}", "e")
        S.wait(lg="all"); S("s_barrier")
        E = fr[0]; E2 = fr[1]
        for p in range(2):
            for u in range(2):
                S.lds(f"ds_read_b128 {v(E+8*p+4*u,4)}, v{ra+u} offset:{2048*p}", ("r", p)); S.lds(f"ds_read_b128 {v(E2+8*p+4*u,4)}, v{ra+u} offset:{2048*p+16384}", ("r", p))
        for p in range(2):
            S.wait(lg=("r", p))
            for i in range(4): S(f"v_pk_add_f32 {v(E+8*p+2*i,2)}, {v(E+8*p+2*i,2)}, {v(E2+8*p+2*i,2)}")
            for i in range(4): S(f"v_pk_add_f32 {v(E+8*p+2*i,2)}, {v(E+8*p+2*i,2)}, {v(xf+8*p+2*i,2)}")
            for i in range(4): S(f"v_cvt_pk_bf16_f32 v{self.x+4*p+i}, v{E+8*p+2*i}, v{E+8*p+2*i+1}")
            g.gstore(S, v(self.x + 4 * p, 4), self.vX[p], SOUT, 0, 0, "out")
        g.stamp(S, 12)
        g.finish(S)

if __name__ == "__main__":
    import argparse, json
    ap = argparse.ArgumentParser(); ap.add_argument("-o", default="parallel_sum__linear_attn_block__mixer_s_mlp__prompt.s"); ap.add_argument("--opt", default="{}")
    args = ap.parse_args()
    opt = eval(args.opt); opt["ref"] = "parallel_sum__linear_attn_block__mixer_s_mlp__prompt.s.ref"
    open(args.o, "w").write(Gen(opt).build())
```
